```python
import torch

def _softmax(x, axis=-1):
    return torch.softmax(x, dim=axis)
def _gelu(x):
    return torch.nn.functional.gelu(x, approximate="tanh")
def _silu(x):
    return torch.nn.functional.silu(x)
def _sigmoid(x):
    return torch.sigmoid(x)
def _layernorm(x, axis=-1, eps=1e-5):
    m = x.mean(dim=axis, keepdim=True)
    v = x.var(dim=axis, keepdim=True, unbiased=False)
    return (x - m) / torch.sqrt(v + eps)
def _scatter_add(tgt, idx, src, axis=0):
    return tgt.clone().index_add_(axis, idx, src)
def _segment_sum(src, seg, n):
    out = torch.zeros((n,) + src.shape[1:], dtype=src.dtype)
    return out.index_add_(0, seg, src)
def _pad(x, pw):
    flat = tuple(v for pair in reversed(pw) for v in pair)
    return torch.nn.functional.pad(x, flat)

kernel_name = 'concat_heads__ssm_conv_s4d__ssm_conv_h3__prompt'

def setup_inputs():

    _w = (lambda a: (lambda t: t.to(torch.bfloat16) if t.is_floating_point() else t)(torch.as_tensor(a)))
    def _A_setup():
        Bsz, L, D, N = 1, 2048, 512, 128
        return {
            "u": _w((lambda *s: torch.randn(*s, dtype=torch.bfloat16) * 0.05)(Bsz, L, D)),
            "log_A_real": _w((lambda *s: torch.randn(*s, dtype=torch.bfloat16) * 3.2)(D, N) * 0.5),
            "A_imag": _w((lambda *s: torch.randn(*s, dtype=torch.bfloat16) * 0.1)(D, N) * 3.14),
            "C_real": _w((lambda *s: torch.randn(*s, dtype=torch.bfloat16) * 0.1)(D, N) / N ** 0.5),
            "C_imag": _w((lambda *s: torch.randn(*s, dtype=torch.bfloat16) * 0.1)(D, N) / N ** 0.5),
            "log_dt": _w((lambda *s: torch.randn(*s, dtype=torch.bfloat16) * 0.05)(D) * 0.5 - 4.0),
            "D_skip": _w((lambda *s: torch.randn(*s, dtype=torch.bfloat16) * 0.05)(D)),
        }
    _A_in = _A_setup()

    def _B_setup():
        B, S, D = 1, 2048, 512
        ks = 4
        return {
            "q": _w((lambda *s: torch.randn(*s, dtype=torch.bfloat16) * 0.05)(B, S, D)),
            "k": _w((lambda *s: torch.randn(*s, dtype=torch.bfloat16) * 0.4)(B, S, D)),
            "v": _w((lambda *s: torch.randn(*s, dtype=torch.bfloat16) * 0.2)(B, S, D)),
            "shift_k": _w((lambda *s: torch.randn(*s, dtype=torch.bfloat16) * 0.4)(D, ks) * 0.5),
            "ssm_k": _w((lambda *s: torch.randn(*s, dtype=torch.bfloat16) * 0.4)(D, S) * (1.0 / S ** 0.5)),
            "ssm_D": _w((lambda *s: torch.randn(*s, dtype=torch.bfloat16) * 0.2)(D)),
        }
    _B_in = _B_setup()

    return {
        "A_u": _A_in["u"],
        "A_log_A_real": _A_in["log_A_real"],
        "A_A_imag": _A_in["A_imag"],
        "A_C_real": _A_in["C_real"],
        "A_C_imag": _A_in["C_imag"],
        "A_log_dt": _A_in["log_dt"],
        "A_D_skip": _A_in["D_skip"],
        "B_q": _B_in["q"],
        "B_k": _B_in["k"],
        "B_v": _B_in["v"],
        "B_shift_k": _B_in["shift_k"],
        "B_ssm_k": _B_in["ssm_k"],
        "B_ssm_D": _B_in["ssm_D"],
    }

def reference(A_u, A_log_A_real, A_A_imag, A_C_real, A_C_imag, A_log_dt, A_D_skip, B_q, B_k, B_v, B_shift_k, B_ssm_k, B_ssm_D):
    def _A_ref(u, log_A_real, A_imag, C_real, C_imag, log_dt, D_skip):
        L = u.shape[1]
        dt = torch.exp(log_dt)
        A = -torch.exp(log_A_real) + 1j * A_imag
        C = (C_real + 1j * C_imag) * dt[:, None]
        pos = (lambda x, dt: x.to(dt))(torch.arange(L), log_dt.dtype)
        P = torch.exp((A * dt[:, None])[:, :, None] * pos[None, None, :])
        K = 2.0 * torch.einsum("dn,dnl->dl", C, P).real
        L2 = 2 * L
        u_t = (lambda x, *d: x.permute(*d))(u, 0, 2, 1)
        Kf = (lambda x, *a, **k: torch.fft.rfft(x.float(), *a, **k))(K, L2)
        Uf = (lambda x, *a, **k: torch.fft.rfft(x.float(), *a, **k))(u_t, L2)
        y = (lambda x, *a, **k: torch.fft.irfft(x, *a, **k).to(torch.bfloat16))(Uf * Kf[None, :, :], L2)[:, :, :L]
        y = (lambda x, *d: x.permute(*d))(y, 0, 2, 1)
        return y + u * D_skip[None, None, :]

    def _B_ref(q, k, v, shift_k, ssm_k, ssm_D):
        B, S, D = q.shape
        ks = shift_k.shape[-1]
        k_pad = _pad(k, ((0, 0), (ks - 1, 0), (0, 0)))
        k_shift = torch.zeros_like(k)
        for t in range(ks):
            k_shift = k_shift + k_pad[:, t:t + S, :] * shift_k[:, ks - 1 - t][None, None, :]
        kv = k_shift * v
        L = 2 * S
        kv_pad = _pad(kv, ((0, 0), (0, S), (0, 0)))
        kf_pad = _pad(ssm_k, ((0, 0), (0, S)))
        kv_f = (lambda x, axes=(-2,-1): torch.fft.rfft2(x.float(), dim=axes))(kv_pad[:, None, :, :], axes=(1, 2))
        kf_f = (lambda x, axes=(-2,-1): torch.fft.rfft2(x.float(), dim=axes))(kf_pad[:, None, :], axes=(1, 2))
        kf_f = (lambda x, *d: x.permute(*d))(kf_f, 1, 2, 0)
        y_f = kv_f * kf_f[None, :, :, :]
        y = (lambda x, s, axes=(-2,-1): torch.fft.irfft2(x, s=s, dim=axes).to(torch.bfloat16))(y_f, (1, L), axes=(1, 2))[:, 0, :S, :]
        y = y + kv * ssm_D[None, None, :]
        return q * y

    a = _A_ref(A_u, A_log_A_real, A_A_imag, A_C_real, A_C_imag, A_log_dt, A_D_skip)
    b = _B_ref(B_q, B_k, B_v, B_shift_k, B_ssm_k, B_ssm_D)
    return torch.concatenate([a, b], axis=-1)
```

```python
import sys

NAME = "concat_heads__ssm_conv_s4d__ssm_conv_h3__prompt"

CS = 4416
XC = 0
KB = 4 * CS
YT = KB
REGION = KB + 95 * 80
MC = 4 * REGION
TT = MC + 4 * 2048
TTS = 4608
KS = MC
LDS_TOTAL = MC + 4 * 2048 + 4 * TTS
assert LDS_TOTAL >= KS + 2051 * 8
assert LDS_TOTAL <= 160 * 1024

out = []
DBGK = len(sys.argv) > 1 and sys.argv[1] == "dbgk"
def e(x): out.append("    " + x)
def lab(x): out.append(x + ":")
def c(x): out.append("    ; " + x)

LOG2E = "0x3fb8aa3b"

def header():
    out.append("; @launch grid=(256,1,1) block=(256,1,1) lds=%d" % LDS_TOTAL)
    out.append('.amdgcn_target "amdgcn-amd-amdhsa--gfx950"')
    out.append(".text")
    out.append(".globl %s_kernel" % NAME)
    out.append(".p2align 8")
    out.append(".type %s_kernel,@function" % NAME)
    out.append("%s_kernel:" % NAME)

def footer(nvgpr):
    out.append("s_endpgm")
    out.append('.section .rodata,"a"')
    out.append(".p2align 6")
    out.append(".amdhsa_kernel %s_kernel" % NAME)
    out.append("  .amdhsa_next_free_vgpr %d" % nvgpr)
    out.append("  .amdhsa_next_free_sgpr 102")
    out.append("  .amdhsa_accum_offset %d" % nvgpr)
    out.append("  .amdhsa_group_segment_fixed_size 0")
    out.append("  .amdhsa_kernarg_size 128")
    out.append("  .amdhsa_user_sgpr_count 2")
    out.append("  .amdhsa_user_sgpr_kernarg_segment_ptr 1")
    out.append("  .amdhsa_system_sgpr_workgroup_id_x 1")
    out.append(".end_amdhsa_kernel")

P = {n: 32 + 2 * i for i, n in enumerate(
    ["u", "logA", "Aimag", "Cr", "Ci", "logdt", "Dskip", "q", "k", "v", "shk", "ssmk", "ssmD", "out", "dbg", "ws"])}

def srd(dst, ptr, nbytes):
    e("s_mov_b32 s%d, s%d" % (dst, P[ptr]))
    e("s_and_b32 s%d, s%d, 0xffff" % (dst + 1, P[ptr] + 1))
    e("s_mov_b32 s%d, 0x%x" % (dst + 2, nbytes))
    e("s_mov_b32 s%d, 0x00020000" % (dst + 3))

sWAVE, sC0, sPART, sREG = 3, 4, 5, 6
sT0, sT1 = 7, 24
SR_A, SR_B, SR_C, SR_O = 8, 12, 16, 20
vLANE = 0
vL2a, vL2b = 1, 2
vXa, vKb, vY, vYra, vYrb = 3, 4, 5, 6, 7
vGOFF = 8
vT = 10
PX = 36
PQ = 52
ACC = 68
FR = 100

def common_prologue():
    e("s_cmp_ge_u32 s2, 256")
    e("s_cbranch_scc1 L_end")
    e("s_load_dwordx16 s[32:47], s[0:1], 0")
    e("s_load_dwordx16 s[48:63], s[0:1], 64")
    e("s_and_b32 s%d, s2, 7" % sT0)
    e("s_lshr_b32 s%d, s2, 3" % sT1)
    e("s_and_b32 s%d, s%d, 15" % (sC0, sT1))
    e("s_lshl_b32 s%d, s%d, 2" % (sC0, sC0))
    e("s_lshl_b32 s%d, s%d, 6" % (sT0, sT0))
    e("s_add_u32 s%d, s%d, s%d" % (sC0, sC0, sT0))
    e("s_lshr_b32 s%d, s%d, 4" % (sPART, sT1))
    e("v_lshrrev_b32 v1, 6, v0")
    e("v_and_b32 v0, 63, v0")
    e("s_nop 1")
    e("v_readfirstlane_b32 s%d, v1" % sWAVE)
    e("s_nop 3")
    e("s_mul_i32 s%d, s%d, %d" % (sREG, sWAVE, REGION))
    e("s_lshl_b32 s%d, s%d, 9" % (sT0, sWAVE))
    e("v_add_u32 v%d, s%d, v%d" % (vT, sT0, vLANE))
    e("v_lshlrev_b32 v%d, 1, v%d" % (vL2a, vT))
    e("v_add_u32 v%d, %d, v%d" % (vL2b, 2 * REGION, vL2a))
    e("s_lshl_b32 s%d, s%d, 1" % (sT1, sC0))
    e("v_lshlrev_b32 v%d, 10, v%d" % (vGOFF, vT))
    e("v_add_u32 v%d, s%d, v%d" % (vGOFF, sT1, vGOFF))
    e("v_and_b32 v%d, 31, v%d" % (vT + 1, vLANE))
    e("v_lshrrev_b32 v%d, 5, v%d" % (vT + 2, vLANE))
    e("v_and_b32 v%d, 3, v%d" % (vT + 3, vLANE))
    e("v_sub_u32 v%d, 3, v%d" % (vT + 3, vT + 3))
    e("s_mov_b32 s%d, %d" % (sT0, CS + 2))
    e("v_mul_lo_u32 v%d, s%d, v%d" % (vXa, sT0, vT + 3))
    e("v_lshlrev_b32 v%d, 1, v%d" % (vT + 4, vT + 1))
    e("v_add_u32 v%d, v%d, v%d" % (vXa, vXa, vT + 4))
    e("v_lshlrev_b32 v%d, 4, v%d" % (vT + 4, vT + 2))
    e("v_sub_u32 v%d, v%d, v%d" % (vXa, vXa, vT + 4))
    e("v_add_u32 v%d, %d, v%d" % (vXa, XC + 58 - 32, vXa))
    e("v_add_u32 v%d, s%d, v%d" % (vXa, sREG, vXa))
    e("v_mul_u32_u24 v%d, 80, v%d" % (vKb, vT + 1))
    e("v_add_u32 v%d, v%d, v%d" % (vKb, vKb, vT + 4))
    e("v_add_u32 v%d, %d, v%d" % (vKb, KB, vKb))
    e("v_add_u32 v%d, s%d, v%d" % (vKb, sREG, vKb))
    e("v_mul_u32_u24 v%d, 72, v%d" % (vY, vT + 1))
    e("v_lshlrev_b32 v%d, 3, v%d" % (vT + 4, vT + 2))
    e("v_add_u32 v%d, v%d, v%d" % (vY, vY, vT + 4))
    e("v_add_u32 v%d, %d, v%d" % (vY, YT, vY))
    e("v_add_u32 v%d, s%d, v%d" % (vY, sREG, vY))
    e("s_lshl_b32 s%d, s%d, 4" % (sT0, sWAVE))
    e("v_add_u32 v%d, s%d, v%d" % (vT + 4, sT0, vT + 2))
    e("v_mul_u32_u24 v%d, 72, v%d" % (vYra, vT + 4))
    e("v_lshlrev_b32 v%d, 1, v%d" % (vT + 4, vT + 1))
    e("v_add_u32 v%d, v%d, v%d" % (vYra, vYra, vT + 4))
    e("v_add_u32 v%d, %d, v%d" % (vYra, YT, vYra))
    e("v_add_u32 v%d, %d, v%d" % (vYrb, 2 * REGION, vYra))
    e("s_waitcnt lgkmcnt(0)")
    srd(SR_O, "out", 2048 * 2048)

def zero_pads():
    c("zero pads")
    e("v_mov_b32 v%d, 0" % (vT + 0))
    e("v_mov_b32 v%d, 0" % (vT + 1))
    e("v_mov_b32 v%d, 0" % (vT + 2))
    e("v_mov_b32 v%d, 0" % (vT + 3))
    e("v_lshlrev_b32 v%d, 4, v%d" % (vT + 4, vLANE))
    e("v_add_u32 v%d, s%d, v%d" % (vT + 4, sREG, vT + 4))
    for i in range(3):
        e("ds_write_b128 v%d, v[%d:%d] offset:%d" % (vT + 4, vT, vT + 3, KB + 1024 * i))
    e("v_mov_b32 v%d, 0x33333334" % (vT + 5))
    e("v_mul_hi_u32 v%d, v%d, v%d" % (vT + 5, vT + 5, vLANE))
    e("v_mul_u32_u24 v%d, 5, v%d" % (vT + 6, vT + 5))
    e("v_sub_u32 v%d, v%d, v%d" % (vT + 6, vLANE, vT + 6))
    e("v_mul_u32_u24 v%d, %d, v%d" % (vT + 5, CS, vT + 5))
    e("v_lshlrev_b32 v%d, 4, v%d" % (vT + 6, vT + 6))
    e("v_add3_u32 v%d, v%d, v%d, s%d" % (vT + 5, vT + 5, vT + 6, sREG))
    e("v_cmp_gt_u32 vcc, 20, v%d" % vLANE)
    e("s_and_saveexec_b64 s[26:27], vcc")
    e("ds_write_b128 v%d, v[%d:%d] offset:%d" % (vT + 5, vT, vT + 3, XC))
    e("s_mov_b64 exec, s[26:27]")

def xcopy_writes(g, p0, p1):
    for ch in range(4):
        reg = p0 if ch < 2 else p1
        op = "ds_write_b16" if (ch & 1) == 0 else "ds_write_b16_d16_hi"
        va = vL2a if ch < 2 else vL2b
        for cc in range(4):
            off = (ch & 1) * REGION + XC + cc * CS + 2 * (36 + cc) + 128 * g
            e("%s v%d, v%d offset:%d" % (op, va, reg, off))

def conv():
    c("conv main loop")
    for i in range(32):
        e("v_mov_b32 v%d, 0" % (ACC + i))
    steps = [(b, k) for b in range(64) for k in range(2)]
    NS = 3
    def fa(s): return FR + 12 * (s % NS)
    def fb1(s): return FR + 12 * (s % NS) + 4
    def fb0(s): return FR + 12 * (s % NS) + 8
    def issue(s):
        b, k = steps[s]
        n = 0
        o = 64 * b - 32 * k + 32
        e("ds_read_b64 v[%d:%d], v%d offset:%d" % (fa(s), fa(s) + 1, vXa, o)); n += 1
        e("ds_read_b64 v[%d:%d], v%d offset:%d" % (fa(s) + 2, fa(s) + 3, vXa, o + 8)); n += 1
        e("ds_read_b128 v[%d:%d], v%d offset:%d" % (fb1(s), fb1(s) + 3, vKb, 80 * (32 - b + 31) + 32 * k)); n += 1
        if b < 32:
            e("ds_read_b128 v[%d:%d], v%d offset:%d" % (fb0(s), fb0(s) + 3, vKb, 80 * (0 - b + 31) + 32 * k)); n += 1
        return n
    cnt = [0] * len(steps)
    cnt[0] = issue(0)
    cnt[1] = issue(1)
    for s in range(len(steps)):
        if s + 2 < len(steps):
            cnt[s + 2] = issue(s + 2)
            outstanding = cnt[s + 1] + cnt[s + 2]
        elif s + 1 < len(steps):
            outstanding = cnt[s + 1]
        else:
            outstanding = 0
        e("s_waitcnt lgkmcnt(%d)" % outstanding)
        b, k = steps[s]
        e("v_mfma_f32_32x32x16_bf16 v[%d:%d], v[%d:%d], v[%d:%d], v[%d:%d]" % (
            ACC + 16, ACC + 31, fa(s), fa(s) + 3, fb1(s), fb1(s) + 3, ACC + 16, ACC + 31))
        if b < 32:
            e("v_mfma_f32_32x32x16_bf16 v[%d:%d], v[%d:%d], v[%d:%d], v[%d:%d]" % (
                ACC, ACC + 15, fa(s), fa(s) + 3, fb0(s), fb0(s) + 3, ACC, ACC + 15))
    e("s_nop 15")
    e("s_nop 3")
    c("write y^T (bf16) to own region")
    for t in range(2):
        for g in range(4):
            a = ACC + 16 * t + 4 * g
            e("v_cvt_pk_bf16_f32 v%d, v%d, v%d" % (vT, a, a + 1))
            e("v_cvt_pk_bf16_f32 v%d, v%d, v%d" % (vT + 1, a + 2, a + 3))
            e("ds_write_b64 v%d, v[%d:%d] offset:%d" % (vY, vT, vT + 1, 72 * 32 * t + 16 * g))
    e("s_waitcnt lgkmcnt(0)")
    e("s_barrier")

def read_y(g, dst):
    for ch in range(4):
        va = vYra if ch < 2 else vYrb
        e("ds_read_u16 v%d, v%d offset:%d" % (dst + ch, va, (ch & 1) * REGION + 144 * g))

def unpack4(p0, p1, dst):
    e("v_lshlrev_b32 v%d, 16, v%d" % (dst, p0))
    e("v_and_b32 v%d, 0xffff0000, v%d" % (dst + 1, p0))
    e("v_lshlrev_b32 v%d, 16, v%d" % (dst + 2, p1))
    e("v_and_b32 v%d, 0xffff0000, v%d" % (dst + 3, p1))

def round4(src):
    e("v_cvt_pk_bf16_f32 v%d, v%d, v%d" % (vT + 20, src, src + 1))
    e("v_cvt_pk_bf16_f32 v%d, v%d, v%d" % (vT + 21, src + 2, src + 3))
    unpack4(vT + 20, vT + 21, src)

def store_out(g, d0):
    e("s_mov_b32 s%d, %d" % (sT0, 131072 * g))
    e("buffer_store_dwordx2 v[%d:%d], v%d, s[%d:%d], s%d offen" % (d0, d0 + 1, vOUT, SR_O, SR_O + 3, sT0))

vOUT = 10 + 22

def out_offset():
    e("v_lshlrev_b32 v%d, 1, v%d" % (vOUT, vGOFF))
    e("s_lshl_b32 s%d, s%d, 1" % (sT0, sC0))
    e("v_subrev_u32 v%d, s%d, v%d" % (vOUT, sT0, vOUT))
    e("s_lshl_b32 s%d, s%d, 10" % (sT0, sPART))
    e("v_add_u32 v%d, s%d, v%d" % (vOUT, sT0, vOUT))

def path_B():
    lab("L_B")
    srd(SR_A, "k", 2048 * 1024)
    srd(SR_B, "v", 2048 * 1024)
    srd(SR_C, "ssmk", 512 * 4096)
    e("s_lshl_b32 s%d, s%d, 3" % (sT0, sC0))
    e("s_add_u32 s%d, s%d, s%d" % (P["shk"], P["shk"], sT0))
    e("s_addc_u32 s%d, s%d, 0" % (P["shk"] + 1, P["shk"] + 1))
    e("s_load_dwordx8 s[84:91], s[%d:%d], 0" % (P["shk"], P["shk"] + 1))
    e("s_lshl_b32 s%d, s%d, 1" % (sT0, sC0))
    e("s_add_u32 s%d, s%d, s%d" % (P["ssmD"], P["ssmD"], sT0))
    e("s_addc_u32 s%d, s%d, 0" % (P["ssmD"] + 1, P["ssmD"] + 1))
    e("s_load_dwordx2 s[92:93], s[%d:%d], 0" % (P["ssmD"], P["ssmD"] + 1))
    for g in range(8):
        e("s_mov_b32 s%d, %d" % (sT0, 65536 * g))
        e("buffer_load_dwordx2 v[%d:%d], v%d, s[%d:%d], s%d offen" % (PX + 2 * g, PX + 2 * g + 1, vGOFF, SR_A, SR_A + 3, sT0))
    for g in range(8):
        e("s_mov_b32 s%d, %d" % (sT0, 65536 * g))
        e("buffer_load_dwordx2 v[%d:%d], v%d, s[%d:%d], s%d offen" % (PQ + 2 * g, PQ + 2 * g + 1, vGOFF, SR_B, SR_B + 3, sT0))
    e("s_add_u32 s%d, s%d, s%d" % (sT0, sC0, sWAVE))
    e("s_lshl_b32 s%d, s%d, 12" % (sT0, sT0))
    e("v_lshlrev_b32 v%d, 4, v%d" % (vT, vLANE))
    e("v_add_u32 v%d, s%d, v%d" % (vT, sT0, vT))
    for t in range(4):
        e("buffer_load_dwordx4 v[%d:%d], v%d, s[%d:%d], 0 offen offset:%d" % (FR + 4 * t, FR + 4 * t + 3, vT, SR_C, SR_C + 3, 1024 * t))
    zero_pads()
    e("s_waitcnt lgkmcnt(0)")
    for i in range(16):
        w = 84 + i // 2
        if i % 2 == 0:
            e("s_lshl_b32 s%d, s%d, 16" % (64 + i, w))
        else:
            e("s_and_b32 s%d, s%d, 0xffff0000" % (64 + i, w))
    for i in range(4):
        w = 92 + i // 2
        if i % 2 == 0:
            e("s_lshl_b32 s%d, s%d, 16" % (80 + i, w))
        else:
            e("s_and_b32 s%d, s%d, 0xffff0000" % (80 + i, w))
    e("v_lshlrev_b32 v%d, 2, v%d" % (vT + 8, vL2a))
    e("v_add_u32 v%d, %d, v%d" % (vT + 8, KS, vT + 8))
    for g in range(8):
        e("s_waitcnt vmcnt(%d)" % (15 - g + 4))
        e("ds_write_b64 v%d, v[%d:%d] offset:%d" % (vT + 8, PX + 2 * g, PX + 2 * g + 1, 24 + 512 * g))
    e("v_mov_b32 v%d, 0" % (vT + 0))
    e("v_mov_b32 v%d, 0" % (vT + 1))
    e("v_lshlrev_b32 v%d, 3, v%d" % (vT + 2, vLANE))
    e("v_add_u32 v%d, %d, v%d" % (vT + 2, KS, vT + 2))
    e("s_cmp_eq_u32 s%d, 0" % sWAVE)
    e("s_cbranch_scc0 L_B_nz")
    e("v_cmp_gt_u32 vcc, 3, v%d" % vLANE)
    e("s_and_saveexec_b64 s[26:27], vcc")
    e("ds_write_b64 v%d, v[%d:%d]" % (vT + 2, vT, vT + 1))
    e("s_mov_b64 exec, s[26:27]")
    lab("L_B_nz")
    e("s_waitcnt vmcnt(0)")
    e("v_lshrrev_b32 v%d, 2, v%d" % (vT + 2, vLANE))
    e("v_mul_u32_u24 v%d, 80, v%d" % (vT + 2, vT + 2))
    e("v_and_b32 v%d, 3, v%d" % (vT + 3, vLANE))
    e("v_lshlrev_b32 v%d, 4, v%d" % (vT + 3, vT + 3))
    e("v_add3_u32 v%d, v%d, v%d, s%d" % (vT + 2, vT + 2, vT + 3, sREG))
    for t in range(4):
        f = FR + 4 * t
        for d in range(4):
            e("v_alignbit_b32 v%d, v%d, v%d, 16" % (vT + 4 + d, f + 3 - d, f + 3 - d))
        e("ds_write_b128 v%d, v[%d:%d] offset:%d" % (vT + 2, vT + 4, vT + 7, KB + 80 * (31 + 16 * t)))
    e("s_waitcnt lgkmcnt(0)")
    e("s_barrier")
    for g in range(8):
        c("kv group %d" % g)
        for j in range(3):
            e("ds_read_b64 v[%d:%d], v%d offset:%d" % (vT + 2 * j, vT + 2 * j + 1, vT + 8, 24 + 512 * g - 8 * (j + 1)))
        e("s_waitcnt lgkmcnt(0)")
        srcs = [(vT + 4, vT + 5), (vT + 2, vT + 3), (vT + 0, vT + 1), (PX + 2 * g, PX + 2 * g + 1)]
        for t in range(4):
            unpack4(srcs[t][0], srcs[t][1], vT + 14)
            for ch in range(4):
                e("v_mul_f32 v%d, s%d, v%d" % (vT + 14 + ch, 64 + 4 * ch + (3 - t), vT + 14 + ch))
            round4(vT + 14)
            if t == 0:
                for ch in range(4):
                    e("v_mov_b32 v%d, v%d" % (vT + 10 + ch, vT + 14 + ch))
            else:
                for ch in range(4):
                    e("v_add_f32 v%d, v%d, v%d" % (vT + 10 + ch, vT + 10 + ch, vT + 14 + ch))
                round4(vT + 10)
        unpack4(PQ + 2 * g, PQ + 2 * g + 1, vT + 14)
        for ch in range(4):
            e("v_mul_f32 v%d, v%d, v%d" % (vT + 10 + ch, vT + 10 + ch, vT + 14 + ch))
        e("v_cvt_pk_bf16_f32 v%d, v%d, v%d" % (PX + 2 * g, vT + 10, vT + 11))
        e("v_cvt_pk_bf16_f32 v%d, v%d, v%d" % (PX + 2 * g + 1, vT + 12, vT + 13))
        xcopy_writes(g, PX + 2 * g, PX + 2 * g + 1)
    srd(SR_A, "q", 2048 * 1024)
    for g in range(8):
        e("s_mov_b32 s%d, %d" % (sT0, 65536 * g))
        e("buffer_load_dwordx2 v[%d:%d], v%d, s[%d:%d], s%d offen" % (PQ + 2 * g, PQ + 2 * g + 1, vGOFF, SR_A, SR_A + 3, sT0))
    e("s_waitcnt lgkmcnt(0)")
    e("s_barrier")
    conv()
    out_offset()
    e("s_waitcnt vmcnt(0)")
    for g in range(8):
        read_y(g, vT + 0)
        e("s_waitcnt lgkmcnt(0)")
        for ch in range(4):
            e("v_lshlrev_b32 v%d, 16, v%d" % (vT + ch, vT + ch))
        unpack4(PX + 2 * g, PX + 2 * g + 1, vT + 4)
        for ch in range(4):
            e("v_mul_f32 v%d, s%d, v%d" % (vT + 4 + ch, 80 + ch, vT + 4 + ch))
        round4(vT + 4)
        for ch in range(4):
            e("v_add_f32 v%d, v%d, v%d" % (vT + ch, vT + ch, vT + 4 + ch))
        round4(vT + 0)
        unpack4(PQ + 2 * g, PQ + 2 * g + 1, vT + 4)
        for ch in range(4):
            e("v_mul_f32 v%d, v%d, v%d" % (vT + ch, vT + ch, vT + 4 + ch))
        e("v_cvt_pk_bf16_f32 v%d, v%d, v%d" % (vT + 8, vT + 0, vT + 1))
        e("v_cvt_pk_bf16_f32 v%d, v%d, v%d" % (vT + 9, vT + 2, vT + 3))
        store_out(g, vT + 8)
    e("s_branch L_end")

def rb_scalar(v):
    e("v_cvt_pk_bf16_f32 v%d, v%d, v%d" % (v, v, v))
    e("v_and_b32 v%d, 0xffff0000, v%d" % (v, v))

def path_A():
    lab("L_A")
    zero_pads()
    srd(SR_A, "u", 2048 * 1024)
    for g in range(8):
        e("s_mov_b32 s%d, %d" % (sT0, 65536 * g))
        e("buffer_load_dwordx2 v[%d:%d], v%d, s[%d:%d], s%d offen" % (PX + 2 * g, PX + 2 * g + 1, vGOFF, SR_A, SR_A + 3, sT0))
    e("s_lshl_b32 s%d, s%d, 1" % (sT0, sC0))
    e("s_add_u32 s%d, s%d, s%d" % (P["Dskip"], P["Dskip"], sT0))
    e("s_addc_u32 s%d, s%d, 0" % (P["Dskip"] + 1, P["Dskip"] + 1))
    e("s_load_dwordx2 s[92:93], s[%d:%d], 0" % (P["Dskip"], P["Dskip"] + 1))
    e("s_add_u32 s%d, s%d, s%d" % (sT1, sC0, sWAVE))
    srd(SR_B, "logA", 512 * 256)
    srd(SR_C, "Aimag", 512 * 256)
    e("s_lshl_b32 s%d, s%d, 8" % (sT0, sT1))
    e("v_lshlrev_b32 v%d, 2, v%d" % (vT, vLANE))
    e("v_add_u32 v%d, s%d, v%d" % (vT, sT0, vT))
    e("buffer_load_dword v%d, v%d, s[%d:%d], 0 offen" % (vT + 1, vT, SR_B, SR_B + 3))
    e("buffer_load_dword v%d, v%d, s[%d:%d], 0 offen" % (vT + 2, vT, SR_C, SR_C + 3))
    srd(SR_B, "Cr", 512 * 256)
    srd(SR_C, "Ci", 512 * 256)
    e("buffer_load_dword v%d, v%d, s[%d:%d], 0 offen" % (vT + 3, vT, SR_B, SR_B + 3))
    e("buffer_load_dword v%d, v%d, s[%d:%d], 0 offen" % (vT + 4, vT, SR_C, SR_C + 3))
    srd(SR_B, "logdt", 1024)
    e("s_lshl_b32 s%d, s%d, 1" % (sT0, sT1))
    e("v_mov_b32 v%d, s%d" % (vT + 5, sT0))
    e("buffer_load_ushort v%d, v%d, s[%d:%d], 0 offen" % (vT + 5, vT + 5, SR_B, SR_B + 3))
    e("s_waitcnt lgkmcnt(0)")
    for i in range(4):
        w = 92 + i // 2
        if i % 2 == 0:
            e("s_lshl_b32 s%d, s%d, 16" % (80 + i, w))
        else:
            e("s_and_b32 s%d, s%d, 0xffff0000" % (80 + i, w))
    e("s_waitcnt vmcnt(0)")
    e("v_lshlrev_b32 v%d, 16, v%d" % (vT + 5, vT + 5))
    e("v_mul_f32 v%d, %s, v%d" % (vT + 5, LOG2E, vT + 5))
    e("v_exp_f32 v%d, v%d" % (vT + 5, vT + 5))
    e("s_nop 0")
    rb_scalar(vT + 5)
    e("v_lshlrev_b32 v%d, 5, v%d" % (vT + 6, vLANE))
    e("v_add_u32 v%d, %d, v%d" % (vT + 6, MC, vT + 6))
    e("s_lshl_b32 s%d, s%d, 11" % (sT0, sWAVE))
    e("v_add_u32 v%d, s%d, v%d" % (vT + 6, sT0, vT + 6))
    for m in range(2):
        ext = ("v_lshlrev_b32 v%d, 16, v%d" if m == 0 else "v_and_b32 v%d, 0xffff0000, v%d")
        e(ext % (vT + 8, vT + 1))
        e(ext % (vT + 9, vT + 2))
        e(ext % (vT + 10, vT + 3))
        e(ext % (vT + 11, vT + 4))
        e("v_mul_f32 v%d, %s, v%d" % (vT + 8, LOG2E, vT + 8))
        e("v_exp_f32 v%d, v%d" % (vT + 8, vT + 8))
        e("s_nop 0")
        rb_scalar(vT + 8)
        e("v_mul_f32 v%d, v%d, v%d" % (vT + 8, vT + 8, vT + 5))
        e("v_mul_f32 v%d, 0xbfb8aa3b, v%d" % (vT + 8, vT + 8))
        e("v_mul_f32 v%d, v%d, v%d" % (vT + 9, vT + 9, vT + 5))
        e("v_mul_f32 v%d, 0.15915494, v%d" % (vT + 9, vT + 9))
        e("v_mul_f32 v%d, v%d, v%d" % (vT + 10, vT + 10, vT + 5))
        e("v_mul_f32 v%d, v%d, v%d" % (vT + 11, vT + 11, vT + 5))
        e("ds_write_b128 v%d, v[%d:%d] offset:%d" % (vT + 6, vT + 8, vT + 11, 16 * m))
    vPB, vPA = vT + 1, vT + 2
    e("v_and_b32 v%d, 31, v%d" % (vT + 3, vLANE))
    e("v_lshlrev_b32 v%d, 3, v%d" % (vPB, vT + 3))
    e("v_cvt_f32_u32 v%d, v%d" % (vPB, vPB))
    hi = [0] * 32
    for r in range(8): hi[r] = r
    for r in range(4): hi[8 + r] = 256 + 2 * r
    for r in range(4): hi[12 + r] = 512 + 4 * (r & 1) + 256 * (r >> 1)
    for r in range(4): hi[16 + r] = 1024 + 256 * r
    hi[20] = 2048
    e("v_mov_b32 v%d, 0" % vPA)
    for r in range(1, 21):
        e("v_cmp_eq_u32 vcc, %d, v%d" % (r, vT + 3))
        e("v_mov_b32 v%d, %d" % (vT + 4, hi[r]))
        e("s_nop 0")
        e("v_cndmask_b32 v%d, v%d, v%d, vcc" % (vPA, vPA, vT + 4))
    e("v_cvt_f32_u32 v%d, v%d" % (vPA, vPA))
    e("v_lshrrev_b32 v%d, 5, v%d" % (vT + 4, vLANE))
    e("v_lshlrev_b32 v%d, 10, v%d" % (vT + 4, vT + 4))
    e("v_add_u32 v%d, %d, v%d" % (vT + 4, MC, vT + 4))
    e("v_add_u32 v%d, s%d, v%d" % (vT + 4, sT0, vT + 4))
    vMCA = vT + 4
    KACC = ACC
    AH, AL, BH, BL = FR, FR + 4, FR + 8, FR + 12
    MCR = FR + 16
    W = vT + 6
    for i in range(16):
        e("v_mov_b32 v%d, 0" % (KACC + i))
    e("s_waitcnt lgkmcnt(0)")
    for s in range(16):
        for q in range(4):
            e("ds_read_b128 v[%d:%d], v%d offset:%d" % (MCR + 4 * q, MCR + 4 * q + 3, vMCA, 64 * s + 16 * q))
        e("s_waitcnt lgkmcnt(0)")
        for q in range(4):
            ar, ai, cr, ci = MCR + 4 * q, MCR + 4 * q + 1, MCR + 4 * q + 2, MCR + 4 * q + 3
            e("v_mul_f32 v%d, v%d, v%d" % (W, ar, vPB))
            e("v_mul_f32 v%d, v%d, v%d" % (W + 1, ai, vPB))
            e("v_exp_f32 v%d, v%d" % (W, W))
            e("v_fract_f32 v%d, v%d" % (W + 1, W + 1))
            e("v_mul_f32 v%d, v%d, v%d" % (W + 4, ar, vPA))
            e("v_mul_f32 v%d, v%d, v%d" % (W + 5, ai, vPA))
            e("v_cos_f32 v%d, v%d" % (W + 2, W + 1))
            e("v_sin_f32 v%d, v%d" % (W + 3, W + 1))
            e("v_exp_f32 v%d, v%d" % (W + 4, W + 4))
            e("v_fract_f32 v%d, v%d" % (W + 5, W + 5))
            e("v_mul_f32 v%d, v%d, v%d" % (W + 2, W, W + 2))
            e("v_mul_f32 v%d, v%d, v%d" % (W + 3, W, W + 3))
            e("v_cos_f32 v%d, v%d" % (W + 6, W + 5))
            e("v_sin_f32 v%d, v%d" % (W + 7, W + 5))
            e("v_cvt_pk_bf16_f32 v%d, v%d, v%d" % (BH + q, W + 2, W + 3))
            e("v_lshlrev_b32 v%d, 16, v%d" % (W + 8, BH + q))
            e("v_and_b32 v%d, 0xffff0000, v%d" % (W + 9, BH + q))
            e("v_sub_f32 v%d, v%d, v%d" % (W + 2, W + 2, W + 8))
            e("v_sub_f32 v%d, v%d, v%d" % (W + 3, W + 3, W + 9))
            e("v_cvt_pk_bf16_f32 v%d, v%d, v%d" % (BL + q, W + 2, W + 3))
            e("v_mul_f32 v%d, v%d, v%d" % (W + 6, W + 4, W + 6))
            e("v_mul_f32 v%d, v%d, v%d" % (W + 7, W + 4, W + 7))
            e("v_mul_f32 v%d, v%d, v%d" % (W + 8, cr, W + 6))
            e("v_fma_f32 v%d, -v%d, v%d, v%d" % (W + 8, ci, W + 7, W + 8))
            e("v_mul_f32 v%d, v%d, v%d" % (W + 9, cr, W + 7))
            e("v_fma_f32 v%d, v%d, v%d, v%d" % (W + 9, ci, W + 6, W + 9))
            e("v_xor_b32 v%d, 0x80000000, v%d" % (W + 9, W + 9))
            e("v_cvt_pk_bf16_f32 v%d, v%d, v%d" % (AH + q, W + 8, W + 9))
            e("v_lshlrev_b32 v%d, 16, v%d" % (W + 10, AH + q))
            e("v_and_b32 v%d, 0xffff0000, v%d" % (W + 11, AH + q))
            e("v_sub_f32 v%d, v%d, v%d" % (W + 8, W + 8, W + 10))
            e("v_sub_f32 v%d, v%d, v%d" % (W + 9, W + 9, W + 11))
            e("v_cvt_pk_bf16_f32 v%d, v%d, v%d" % (AL + q, W + 8, W + 9))
        e("s_nop 1")
        for (a, b) in ((AH, BH), (AH, BL), (AL, BH)):
            e("v_mfma_f32_32x32x16_bf16 v[%d:%d], v[%d:%d], v[%d:%d], v[%d:%d]" % (
                KACC, KACC + 15, a, a + 3, b, b + 3, KACC, KACC + 15))
    e("s_nop 15")
    e("s_nop 3")
    c("T table")
    e("v_and_b32 v%d, 31, v%d" % (W, vLANE))
    e("v_lshlrev_b32 v%d, 4, v%d" % (W, W))
    e("v_add_u32 v%d, %d, v%d" % (W, TT, W))
    e("s_mul_i32 s%d, s%d, %d" % (sT0, sWAVE, TTS))
    e("v_add_u32 v%d, s%d, v%d" % (W, sT0, W))
    e("v_cmp_lt_u32 vcc, 31, v%d" % vLANE)
    for v in range(12):
        g, q = v // 4, v % 4
        r0, r1 = 8 * g + q, 8 * g + 4 + q
        h0 = hi[r0] if r0 <= 20 else 2052
        h1 = hi[r1] if r1 <= 20 else 2052
        e("v_mov_b32 v%d, %d" % (W + 1, 2 * h0))
        e("v_mov_b32 v%d, %d" % (W + 2, 2 * h1))
        e("v_cndmask_b32 v%d, v%d, v%d, vcc" % (W + 1, W + 1, W + 2))
        e("v_add_u32 v%d, v%d, v%d" % (W + 1, W + 1, W))
        e("v_add_f32 v%d, v%d, v%d" % (W + 3, KACC + v, KACC + v))
        e("v_cvt_pk_bf16_f32 v%d, v%d, v%d" % (W + 3, W + 3, W + 3))
        e("ds_write_b16 v%d, v%d" % (W + 1, W + 3))
    e("s_waitcnt lgkmcnt(0)")
    c("gather K")
    e("v_lshrrev_b32 v%d, 2, v%d" % (W + 10, vLANE))
    e("v_mul_u32_u24 v%d, 80, v%d" % (W + 10, W + 10))
    e("v_and_b32 v%d, 3, v%d" % (W + 11, vLANE))
    e("v_lshlrev_b32 v%d, 4, v%d" % (W + 11, W + 11))
    e("v_add3_u32 v%d, v%d, v%d, s%d" % (W + 10, W + 10, W + 11, sREG))
    e("v_mov_b32 v%d, %d" % (W + 11, TT))
    e("v_add_u32 v%d, s%d, v%d" % (W + 11, sT0, W + 11))
    for t in range(4):
        for d in range(4):
            for hh in range(2):
                el = 7 - 2 * d - hh
                e("v_lshlrev_b32 v%d, 3, v%d" % (W, vLANE))
                e("v_add_u32 v%d, %d, v%d" % (W, 512 * t + el, W))
                e("v_cvt_f32_u32 v%d, v%d" % (W, W))
                e("v_cvt_pk_bf16_f32 v%d, v%d, v%d" % (W, W, W))
                e("v_and_b32 v%d, 0xffff0000, v%d" % (W, W))
                e("v_cvt_u32_f32 v%d, v%d" % (W, W))
                e("v_lshl_add_u32 v%d, v%d, 1, v%d" % (W, W, W + 11))
                e("ds_read_u16 v%d, v%d" % (MCR + 2 * d + hh, W))
        e("s_waitcnt lgkmcnt(0)")
        for d in range(4):
            e("v_lshl_or_b32 v%d, v%d, 16, v%d" % (W + 4 + d, MCR + 2 * d + 1, MCR + 2 * d))
        e("ds_write_b128 v%d, v[%d:%d] offset:%d" % (W + 10, W + 4, W + 7, KB + 80 * (31 + 16 * t)))
    e("s_waitcnt lgkmcnt(0)")
    e("s_barrier")
    e("s_waitcnt vmcnt(0)")
    for g in range(8):
        xcopy_writes(g, PX + 2 * g, PX + 2 * g + 1)
    e("s_waitcnt lgkmcnt(0)")
    e("s_barrier")
    if DBGK:
        out_offset()
        e("v_xor_b32 v%d, 7, v%d" % (vT + 10, vLANE))
        e("v_and_b32 v%d, 31, v%d" % (vT + 10, vT + 10))
        e("v_lshlrev_b32 v%d, 1, v%d" % (vT + 10, vT + 10))
        e("v_lshrrev_b32 v%d, 5, v%d" % (vT + 11, vLANE))
        e("s_lshl_b32 s%d, s%d, 4" % (sT0, sWAVE))
        e("v_add_u32 v%d, s%d, v%d" % (vT + 11, sT0, vT + 11))
        e("v_mul_u32_u24 v%d, 80, v%d" % (vT + 11, vT + 11))
        e("v_add_u32 v%d, v%d, v%d" % (vT + 10, vT + 10, vT + 11))
        e("v_add_u32 v%d, %d, v%d" % (vT + 11, 2 * REGION, vT + 10))
        for g in range(8):
            for ch in range(4):
                va = vT + 10 if ch < 2 else vT + 11
                e("ds_read_u16 v%d, v%d offset:%d" % (vT + ch, va, (ch & 1) * REGION + KB + 80 * 31 + 160 * g))
            e("s_waitcnt lgkmcnt(0)")
            e("v_lshl_or_b32 v%d, v%d, 16, v%d" % (vT + 8, vT + 1, vT + 0))
            e("v_lshl_or_b32 v%d, v%d, 16, v%d" % (vT + 9, vT + 3, vT + 2))
            store_out(g, vT + 8)
        e("s_branch L_end")
        return
    conv()
    out_offset()
    for g in range(8):
        read_y(g, vT + 0)
        e("s_waitcnt lgkmcnt(0)")
        for ch in range(4):
            e("v_lshlrev_b32 v%d, 16, v%d" % (vT + ch, vT + ch))
        unpack4(PX + 2 * g, PX + 2 * g + 1, vT + 4)
        for ch in range(4):
            e("v_mul_f32 v%d, s%d, v%d" % (vT + 4 + ch, 80 + ch, vT + 4 + ch))
        round4(vT + 4)
        for ch in range(4):
            e("v_add_f32 v%d, v%d, v%d" % (vT + ch, vT + ch, vT + 4 + ch))
        e("v_cvt_pk_bf16_f32 v%d, v%d, v%d" % (vT + 8, vT + 0, vT + 1))
        e("v_cvt_pk_bf16_f32 v%d, v%d, v%d" % (vT + 9, vT + 2, vT + 3))
        store_out(g, vT + 8)
    e("s_branch L_end")

def main():
    hdr = open("cdna_kernels/%s.s.ref" % NAME).read().split("\n")
    comments = [l for l in hdr if l.startswith(";") and "@launch" not in l]
    for l in comments: out.append(l)
    header()
    common_prologue()
    e("s_cmp_eq_u32 s%d, 0" % sPART)
    e("s_cbranch_scc1 L_A")
    path_B()
    path_A()
    lab("L_end")
    footer(256)
    open("cdna_kernels/%s.s" % NAME, "w").write("\n".join(out) + "\n")
    print("lines", len(out))

main()
```

```python
import sys

NAME = "concat_heads__ssm_conv_s4d__ssm_conv_h3__prompt"

CS = 4416
XC = 0
KB = 4 * CS
YT = KB
REGION = KB + 95 * 80
MC = 4 * REGION
TT = MC + 4 * 2048
TTS = 4608
KS = MC
LDS_TOTAL = MC + 4 * 2048 + 4 * TTS
assert LDS_TOTAL >= KS + 2051 * 8
assert LDS_TOTAL <= 160 * 1024

out = []
DBGK = len(sys.argv) > 1 and sys.argv[1] == "dbgk"
def e(x): out.append("    " + x)
def lab(x): out.append(x + ":")
def c(x): out.append("    ; " + x)

LOG2E = "0x3fb8aa3b"

def header():
    out.append("; @launch grid=(256,1,1) block=(256,1,1) lds=%d" % LDS_TOTAL)
    out.append('.amdgcn_target "amdgcn-amd-amdhsa--gfx950"')
    out.append(".text")
    out.append(".globl %s_kernel" % NAME)
    out.append(".p2align 8")
    out.append(".type %s_kernel,@function" % NAME)
    out.append("%s_kernel:" % NAME)

def footer(nvgpr):
    out.append("s_endpgm")
    out.append('.section .rodata,"a"')
    out.append(".p2align 6")
    out.append(".amdhsa_kernel %s_kernel" % NAME)
    out.append("  .amdhsa_next_free_vgpr %d" % nvgpr)
    out.append("  .amdhsa_next_free_sgpr 102")
    out.append("  .amdhsa_accum_offset %d" % nvgpr)
    out.append("  .amdhsa_group_segment_fixed_size 0")
    out.append("  .amdhsa_kernarg_size 128")
    out.append("  .amdhsa_user_sgpr_count 2")
    out.append("  .amdhsa_user_sgpr_kernarg_segment_ptr 1")
    out.append("  .amdhsa_system_sgpr_workgroup_id_x 1")
    out.append(".end_amdhsa_kernel")

P = {n: 32 + 2 * i for i, n in enumerate(
    ["u", "logA", "Aimag", "Cr", "Ci", "logdt", "Dskip", "q", "k", "v", "shk", "ssmk", "ssmD", "out", "dbg", "ws"])}

def srd(dst, ptr, nbytes):
    e("s_mov_b32 s%d, s%d" % (dst, P[ptr]))
    e("s_and_b32 s%d, s%d, 0xffff" % (dst + 1, P[ptr] + 1))
    e("s_mov_b32 s%d, 0x%x" % (dst + 2, nbytes))
    e("s_mov_b32 s%d, 0x00020000" % (dst + 3))

sWAVE, sC0, sPART, sREG = 3, 4, 5, 6
sT0, sT1 = 7, 24
SR_A, SR_B, SR_C, SR_O = 8, 12, 16, 20
vLANE = 0
vL2a, vL2b = 1, 2
vXa, vKb, vY, vYra, vYrb = 3, 4, 5, 6, 7
vGOFF = 8
vT = 10
PX = 36
PQ = 52
ACC = 68
FR = 100

STAMP = len(sys.argv) > 1 and sys.argv[1] == "stamp"
stamp_n = [0]
def stamp():
    if not STAMP: return
    i = stamp_n[0]; stamp_n[0] += 1
    e("s_memtime s[28:29]")
    e("s_waitcnt lgkmcnt(0)")
    e("s_mov_b32 s%d, s28" % (94 + i))
def stamp_flush(base):
    if not STAMP: return
    e("s_cmp_eq_u32 s%d, 0" % sWAVE)
    e("s_cbranch_scc0 L_nost%d" % base)
    e("s_and_b32 s28, s2, 127")
    e("s_cmp_eq_u32 s28, 0")
    e("s_cbranch_scc0 L_nost%d" % base)
    e("s_mov_b32 s28, s%d" % P["dbg"])
    e("s_and_b32 s29, s%d, 0xffff" % (P["dbg"] + 1))
    e("s_mov_b32 s30, 256")
    e("s_mov_b32 s31, 0x00020000")
    for i in range(8):
        e("v_mov_b32 v%d, s%d" % (vT, 94 + i))
        e("v_mov_b32 v%d, %d" % (vT + 1, 4 * (base + i)))
        e("buffer_store_dword v%d, v%d, s[28:31], 0 offen" % (vT, vT + 1))
    lab("L_nost%d" % base)
    stamp_n[0] = 0

def common_prologue():
    e("s_cmp_ge_u32 s2, 256")
    e("s_cbranch_scc1 L_end")
    e("s_load_dwordx16 s[32:47], s[0:1], 0")
    e("s_load_dwordx16 s[48:63], s[0:1], 64")
    e("s_and_b32 s%d, s2, 7" % sT0)
    e("s_lshr_b32 s%d, s2, 3" % sT1)
    e("s_and_b32 s%d, s%d, 15" % (sC0, sT1))
    e("s_lshl_b32 s%d, s%d, 2" % (sC0, sC0))
    e("s_lshl_b32 s%d, s%d, 6" % (sT0, sT0))
    e("s_add_u32 s%d, s%d, s%d" % (sC0, sC0, sT0))
    e("s_lshr_b32 s%d, s%d, 4" % (sPART, sT1))
    e("v_lshrrev_b32 v1, 6, v0")
    e("v_and_b32 v0, 63, v0")
    e("s_nop 1")
    e("v_readfirstlane_b32 s%d, v1" % sWAVE)
    e("s_nop 3")
    e("s_mul_i32 s%d, s%d, %d" % (sREG, sWAVE, REGION))
    e("s_lshl_b32 s%d, s%d, 9" % (sT0, sWAVE))
    e("v_add_u32 v%d, s%d, v%d" % (vT, sT0, vLANE))
    e("v_lshlrev_b32 v%d, 1, v%d" % (vL2a, vT))
    e("v_add_u32 v%d, %d, v%d" % (vL2b, 2 * REGION, vL2a))
    e("s_lshl_b32 s%d, s%d, 1" % (sT1, sC0))
    e("v_lshlrev_b32 v%d, 10, v%d" % (vGOFF, vT))
    e("v_add_u32 v%d, s%d, v%d" % (vGOFF, sT1, vGOFF))
    e("v_and_b32 v%d, 31, v%d" % (vT + 1, vLANE))
    e("v_lshrrev_b32 v%d, 5, v%d" % (vT + 2, vLANE))
    e("v_and_b32 v%d, 3, v%d" % (vT + 3, vLANE))
    e("v_sub_u32 v%d, 3, v%d" % (vT + 3, vT + 3))
    e("s_mov_b32 s%d, %d" % (sT0, CS + 2))
    e("v_mul_lo_u32 v%d, s%d, v%d" % (vXa, sT0, vT + 3))
    e("v_lshlrev_b32 v%d, 1, v%d" % (vT + 4, vT + 1))
    e("v_add_u32 v%d, v%d, v%d" % (vXa, vXa, vT + 4))
    e("v_lshlrev_b32 v%d, 4, v%d" % (vT + 4, vT + 2))
    e("v_sub_u32 v%d, v%d, v%d" % (vXa, vXa, vT + 4))
    e("v_add_u32 v%d, %d, v%d" % (vXa, XC + 58 - 32, vXa))
    e("v_add_u32 v%d, s%d, v%d" % (vXa, sREG, vXa))
    e("v_mul_u32_u24 v%d, 80, v%d" % (vKb, vT + 1))
    e("v_add_u32 v%d, v%d, v%d" % (vKb, vKb, vT + 4))
    e("v_add_u32 v%d, %d, v%d" % (vKb, KB, vKb))
    e("v_add_u32 v%d, s%d, v%d" % (vKb, sREG, vKb))
    e("v_mul_u32_u24 v%d, 72, v%d" % (vY, vT + 1))
    e("v_lshlrev_b32 v%d, 3, v%d" % (vT + 4, vT + 2))
    e("v_add_u32 v%d, v%d, v%d" % (vY, vY, vT + 4))
    e("v_add_u32 v%d, %d, v%d" % (vY, YT, vY))
    e("v_add_u32 v%d, s%d, v%d" % (vY, sREG, vY))
    e("s_lshl_b32 s%d, s%d, 4" % (sT0, sWAVE))
    e("v_add_u32 v%d, s%d, v%d" % (vT + 4, sT0, vT + 2))
    e("v_mul_u32_u24 v%d, 72, v%d" % (vYra, vT + 4))
    e("v_lshlrev_b32 v%d, 1, v%d" % (vT + 4, vT + 1))
    e("v_add_u32 v%d, v%d, v%d" % (vYra, vYra, vT + 4))
    e("v_add_u32 v%d, %d, v%d" % (vYra, YT, vYra))
    e("v_add_u32 v%d, %d, v%d" % (vYrb, 2 * REGION, vYra))
    e("s_waitcnt lgkmcnt(0)")
    srd(SR_O, "out", 2048 * 2048)

def zero_pads():
    c("zero pads")
    e("v_mov_b32 v%d, 0" % (vT + 0))
    e("v_mov_b32 v%d, 0" % (vT + 1))
    e("v_mov_b32 v%d, 0" % (vT + 2))
    e("v_mov_b32 v%d, 0" % (vT + 3))
    e("v_lshlrev_b32 v%d, 4, v%d" % (vT + 4, vLANE))
    e("v_add_u32 v%d, s%d, v%d" % (vT + 4, sREG, vT + 4))
    for i in range(3):
        e("ds_write_b128 v%d, v[%d:%d] offset:%d" % (vT + 4, vT, vT + 3, KB + 1024 * i))
    e("v_mov_b32 v%d, 0x33333334" % (vT + 5))
    e("v_mul_hi_u32 v%d, v%d, v%d" % (vT + 5, vT + 5, vLANE))
    e("v_mul_u32_u24 v%d, 5, v%d" % (vT + 6, vT + 5))
    e("v_sub_u32 v%d, v%d, v%d" % (vT + 6, vLANE, vT + 6))
    e("v_mul_u32_u24 v%d, %d, v%d" % (vT + 5, CS, vT + 5))
    e("v_lshlrev_b32 v%d, 4, v%d" % (vT + 6, vT + 6))
    e("v_add3_u32 v%d, v%d, v%d, s%d" % (vT + 5, vT + 5, vT + 6, sREG))
    e("v_cmp_gt_u32 vcc, 20, v%d" % vLANE)
    e("s_and_saveexec_b64 s[26:27], vcc")
    e("ds_write_b128 v%d, v[%d:%d] offset:%d" % (vT + 5, vT, vT + 3, XC))
    e("s_mov_b64 exec, s[26:27]")

def xcopy_writes(g, p0, p1):
    for ch in range(4):
        reg = p0 if ch < 2 else p1
        op = "ds_write_b16" if (ch & 1) == 0 else "ds_write_b16_d16_hi"
        va = vL2a if ch < 2 else vL2b
        for cc in range(4):
            off = (ch & 1) * REGION + XC + cc * CS + 2 * (36 + cc) + 128 * g
            e("%s v%d, v%d offset:%d" % (op, va, reg, off))

def conv():
    c("conv main loop")
    for i in range(32):
        e("v_mov_b32 v%d, 0" % (ACC + i))
    steps = [(b, k) for b in range(64) for k in range(2)]
    NS = 3
    def fa(s): return FR + 12 * (s % NS)
    def fb1(s): return FR + 12 * (s % NS) + 4
    def fb0(s): return FR + 12 * (s % NS) + 8
    def issue(s):
        b, k = steps[s]
        n = 0
        o = 64 * b - 32 * k + 32
        e("ds_read_b64 v[%d:%d], v%d offset:%d" % (fa(s), fa(s) + 1, vXa, o)); n += 1
        e("ds_read_b64 v[%d:%d], v%d offset:%d" % (fa(s) + 2, fa(s) + 3, vXa, o + 8)); n += 1
        e("ds_read_b128 v[%d:%d], v%d offset:%d" % (fb1(s), fb1(s) + 3, vKb, 80 * (32 - b + 31) + 32 * k)); n += 1
        if b < 32:
            e("ds_read_b128 v[%d:%d], v%d offset:%d" % (fb0(s), fb0(s) + 3, vKb, 80 * (0 - b + 31) + 32 * k)); n += 1
        return n
    cnt = [0] * len(steps)
    cnt[0] = issue(0)
    cnt[1] = issue(1)
    for s in range(len(steps)):
        if s + 2 < len(steps):
            cnt[s + 2] = issue(s + 2)
            outstanding = cnt[s + 1] + cnt[s + 2]
        elif s + 1 < len(steps):
            outstanding = cnt[s + 1]
        else:
            outstanding = 0
        e("s_waitcnt lgkmcnt(%d)" % outstanding)
        b, k = steps[s]
        e("v_mfma_f32_32x32x16_bf16 v[%d:%d], v[%d:%d], v[%d:%d], v[%d:%d]" % (
            ACC + 16, ACC + 31, fa(s), fa(s) + 3, fb1(s), fb1(s) + 3, ACC + 16, ACC + 31))
        if b < 32:
            e("v_mfma_f32_32x32x16_bf16 v[%d:%d], v[%d:%d], v[%d:%d], v[%d:%d]" % (
                ACC, ACC + 15, fa(s), fa(s) + 3, fb0(s), fb0(s) + 3, ACC, ACC + 15))
    e("s_nop 15")
    e("s_nop 3")
    c("write y^T (bf16) to own region")
    for t in range(2):
        for g in range(4):
            a = ACC + 16 * t + 4 * g
            e("v_cvt_pk_bf16_f32 v%d, v%d, v%d" % (vT, a, a + 1))
            e("v_cvt_pk_bf16_f32 v%d, v%d, v%d" % (vT + 1, a + 2, a + 3))
            e("ds_write_b64 v%d, v[%d:%d] offset:%d" % (vY, vT, vT + 1, 72 * 32 * t + 16 * g))
    e("s_waitcnt lgkmcnt(0)")
    stamp()
    e("s_barrier")

def read_y(g, dst):
    for ch in range(4):
        va = vYra if ch < 2 else vYrb
        e("ds_read_u16 v%d, v%d offset:%d" % (dst + ch, va, (ch & 1) * REGION + 144 * g))

def unpack4(p0, p1, dst):
    e("v_lshlrev_b32 v%d, 16, v%d" % (dst, p0))
    e("v_and_b32 v%d, 0xffff0000, v%d" % (dst + 1, p0))
    e("v_lshlrev_b32 v%d, 16, v%d" % (dst + 2, p1))
    e("v_and_b32 v%d, 0xffff0000, v%d" % (dst + 3, p1))

def round4(src):
    e("v_cvt_pk_bf16_f32 v%d, v%d, v%d" % (vT + 20, src, src + 1))
    e("v_cvt_pk_bf16_f32 v%d, v%d, v%d" % (vT + 21, src + 2, src + 3))
    unpack4(vT + 20, vT + 21, src)

def store_out(g, d0):
    e("s_mov_b32 s%d, %d" % (sT0, 131072 * g))
    e("buffer_store_dwordx2 v[%d:%d], v%d, s[%d:%d], s%d offen" % (d0, d0 + 1, vOUT, SR_O, SR_O + 3, sT0))

vOUT = 10 + 22

def out_offset():
    e("v_lshlrev_b32 v%d, 1, v%d" % (vOUT, vGOFF))
    e("s_lshl_b32 s%d, s%d, 1" % (sT0, sC0))
    e("v_subrev_u32 v%d, s%d, v%d" % (vOUT, sT0, vOUT))
    e("s_lshl_b32 s%d, s%d, 10" % (sT0, sPART))
    e("v_add_u32 v%d, s%d, v%d" % (vOUT, sT0, vOUT))

def path_B():
    lab("L_B")
    stamp()
    srd(SR_A, "k", 2048 * 1024)
    srd(SR_B, "v", 2048 * 1024)
    srd(SR_C, "ssmk", 512 * 4096)
    e("s_lshl_b32 s%d, s%d, 3" % (sT0, sC0))
    e("s_add_u32 s%d, s%d, s%d" % (P["shk"], P["shk"], sT0))
    e("s_addc_u32 s%d, s%d, 0" % (P["shk"] + 1, P["shk"] + 1))
    e("s_load_dwordx8 s[84:91], s[%d:%d], 0" % (P["shk"], P["shk"] + 1))
    e("s_lshl_b32 s%d, s%d, 1" % (sT0, sC0))
    e("s_add_u32 s%d, s%d, s%d" % (P["ssmD"], P["ssmD"], sT0))
    e("s_addc_u32 s%d, s%d, 0" % (P["ssmD"] + 1, P["ssmD"] + 1))
    e("s_load_dwordx2 s[92:93], s[%d:%d], 0" % (P["ssmD"], P["ssmD"] + 1))
    for g in range(8):
        e("s_mov_b32 s%d, %d" % (sT0, 65536 * g))
        e("buffer_load_dwordx2 v[%d:%d], v%d, s[%d:%d], s%d offen" % (PX + 2 * g, PX + 2 * g + 1, vGOFF, SR_A, SR_A + 3, sT0))
    for g in range(8):
        e("s_mov_b32 s%d, %d" % (sT0, 65536 * g))
        e("buffer_load_dwordx2 v[%d:%d], v%d, s[%d:%d], s%d offen" % (PQ + 2 * g, PQ + 2 * g + 1, vGOFF, SR_B, SR_B + 3, sT0))
    e("s_add_u32 s%d, s%d, s%d" % (sT0, sC0, sWAVE))
    e("s_lshl_b32 s%d, s%d, 12" % (sT0, sT0))
    e("v_lshlrev_b32 v%d, 4, v%d" % (vT, vLANE))
    e("v_add_u32 v%d, s%d, v%d" % (vT, sT0, vT))
    for t in range(4):
        e("buffer_load_dwordx4 v[%d:%d], v%d, s[%d:%d], 0 offen offset:%d" % (FR + 4 * t, FR + 4 * t + 3, vT, SR_C, SR_C + 3, 1024 * t))
    zero_pads()
    e("s_waitcnt lgkmcnt(0)")
    for i in range(16):
        w = 84 + i // 2
        if i % 2 == 0:
            e("s_lshl_b32 s%d, s%d, 16" % (64 + i, w))
        else:
            e("s_and_b32 s%d, s%d, 0xffff0000" % (64 + i, w))
    for i in range(4):
        w = 92 + i // 2
        if i % 2 == 0:
            e("s_lshl_b32 s%d, s%d, 16" % (80 + i, w))
        else:
            e("s_and_b32 s%d, s%d, 0xffff0000" % (80 + i, w))
    e("v_lshlrev_b32 v%d, 2, v%d" % (vT + 8, vL2a))
    e("v_add_u32 v%d, %d, v%d" % (vT + 8, KS, vT + 8))
    for g in range(8):
        e("s_waitcnt vmcnt(%d)" % (15 - g + 4))
        e("ds_write_b64 v%d, v[%d:%d] offset:%d" % (vT + 8, PX + 2 * g, PX + 2 * g + 1, 24 + 512 * g))
    e("v_mov_b32 v%d, 0" % (vT + 0))
    e("v_mov_b32 v%d, 0" % (vT + 1))
    e("v_lshlrev_b32 v%d, 3, v%d" % (vT + 2, vLANE))
    e("v_add_u32 v%d, %d, v%d" % (vT + 2, KS, vT + 2))
    e("s_cmp_eq_u32 s%d, 0" % sWAVE)
    e("s_cbranch_scc0 L_B_nz")
    e("v_cmp_gt_u32 vcc, 3, v%d" % vLANE)
    e("s_and_saveexec_b64 s[26:27], vcc")
    e("ds_write_b64 v%d, v[%d:%d]" % (vT + 2, vT, vT + 1))
    e("s_mov_b64 exec, s[26:27]")
    lab("L_B_nz")
    e("s_waitcnt vmcnt(0)")
    e("v_lshrrev_b32 v%d, 2, v%d" % (vT + 2, vLANE))
    e("v_mul_u32_u24 v%d, 80, v%d" % (vT + 2, vT + 2))
    e("v_and_b32 v%d, 3, v%d" % (vT + 3, vLANE))
    e("v_lshlrev_b32 v%d, 4, v%d" % (vT + 3, vT + 3))
    e("v_add3_u32 v%d, v%d, v%d, s%d" % (vT + 2, vT + 2, vT + 3, sREG))
    for t in range(4):
        f = FR + 4 * t
        for d in range(4):
            e("v_alignbit_b32 v%d, v%d, v%d, 16" % (vT + 4 + d, f + 3 - d, f + 3 - d))
        e("ds_write_b128 v%d, v[%d:%d] offset:%d" % (vT + 2, vT + 4, vT + 7, KB + 80 * (31 + 16 * t)))
    e("s_waitcnt lgkmcnt(0)")
    stamp()
    e("s_barrier")
    stamp()
    for g in range(8):
        c("kv group %d" % g)
        for j in range(3):
            e("ds_read_b64 v[%d:%d], v%d offset:%d" % (vT + 2 * j, vT + 2 * j + 1, vT + 8, 24 + 512 * g - 8 * (j + 1)))
        e("s_waitcnt lgkmcnt(0)")
        srcs = [(vT + 4, vT + 5), (vT + 2, vT + 3), (vT + 0, vT + 1), (PX + 2 * g, PX + 2 * g + 1)]
        for t in range(4):
            unpack4(srcs[t][0], srcs[t][1], vT + 14)
            for ch in range(4):
                e("v_mul_f32 v%d, s%d, v%d" % (vT + 14 + ch, 64 + 4 * ch + (3 - t), vT + 14 + ch))
            round4(vT + 14)
            if t == 0:
                for ch in range(4):
                    e("v_mov_b32 v%d, v%d" % (vT + 10 + ch, vT + 14 + ch))
            else:
                for ch in range(4):
                    e("v_add_f32 v%d, v%d, v%d" % (vT + 10 + ch, vT + 10 + ch, vT + 14 + ch))
                round4(vT + 10)
        unpack4(PQ + 2 * g, PQ + 2 * g + 1, vT + 14)
        for ch in range(4):
            e("v_mul_f32 v%d, v%d, v%d" % (vT + 10 + ch, vT + 10 + ch, vT + 14 + ch))
        e("v_cvt_pk_bf16_f32 v%d, v%d, v%d" % (PX + 2 * g, vT + 10, vT + 11))
        e("v_cvt_pk_bf16_f32 v%d, v%d, v%d" % (PX + 2 * g + 1, vT + 12, vT + 13))
        xcopy_writes(g, PX + 2 * g, PX + 2 * g + 1)
    srd(SR_A, "q", 2048 * 1024)
    for g in range(8):
        e("s_mov_b32 s%d, %d" % (sT0, 65536 * g))
        e("buffer_load_dwordx2 v[%d:%d], v%d, s[%d:%d], s%d offen" % (PQ + 2 * g, PQ + 2 * g + 1, vGOFF, SR_A, SR_A + 3, sT0))
    e("s_waitcnt lgkmcnt(0)")
    stamp()
    e("s_barrier")
    stamp()
    conv()
    out_offset()
    e("s_waitcnt vmcnt(0)")
    for g in range(8):
        read_y(g, vT + 0)
        e("s_waitcnt lgkmcnt(0)")
        for ch in range(4):
            e("v_lshlrev_b32 v%d, 16, v%d" % (vT + ch, vT + ch))
        unpack4(PX + 2 * g, PX + 2 * g + 1, vT + 4)
        for ch in range(4):
            e("v_mul_f32 v%d, s%d, v%d" % (vT + 4 + ch, 80 + ch, vT + 4 + ch))
        round4(vT + 4)
        for ch in range(4):
            e("v_add_f32 v%d, v%d, v%d" % (vT + ch, vT + ch, vT + 4 + ch))
        round4(vT + 0)
        unpack4(PQ + 2 * g, PQ + 2 * g + 1, vT + 4)
        for ch in range(4):
            e("v_mul_f32 v%d, v%d, v%d" % (vT + ch, vT + ch, vT + 4 + ch))
        e("v_cvt_pk_bf16_f32 v%d, v%d, v%d" % (vT + 8, vT + 0, vT + 1))
        e("v_cvt_pk_bf16_f32 v%d, v%d, v%d" % (vT + 9, vT + 2, vT + 3))
        store_out(g, vT + 8)
    stamp()
    stamp_flush(8)
    e("s_branch L_end")

def rb_scalar(v):
    e("v_cvt_pk_bf16_f32 v%d, v%d, v%d" % (v, v, v))
    e("v_and_b32 v%d, 0xffff0000, v%d" % (v, v))

def path_A():
    lab("L_A")
    stamp()
    zero_pads()
    srd(SR_A, "u", 2048 * 1024)
    for g in range(8):
        e("s_mov_b32 s%d, %d" % (sT0, 65536 * g))
        e("buffer_load_dwordx2 v[%d:%d], v%d, s[%d:%d], s%d offen" % (PX + 2 * g, PX + 2 * g + 1, vGOFF, SR_A, SR_A + 3, sT0))
    e("s_lshl_b32 s%d, s%d, 1" % (sT0, sC0))
    e("s_add_u32 s%d, s%d, s%d" % (P["Dskip"], P["Dskip"], sT0))
    e("s_addc_u32 s%d, s%d, 0" % (P["Dskip"] + 1, P["Dskip"] + 1))
    e("s_load_dwordx2 s[92:93], s[%d:%d], 0" % (P["Dskip"], P["Dskip"] + 1))
    e("s_add_u32 s%d, s%d, s%d" % (sT1, sC0, sWAVE))
    srd(SR_B, "logA", 512 * 256)
    srd(SR_C, "Aimag", 512 * 256)
    e("s_lshl_b32 s%d, s%d, 8" % (sT0, sT1))
    e("v_lshlrev_b32 v%d, 2, v%d" % (vT, vLANE))
    e("v_add_u32 v%d, s%d, v%d" % (vT, sT0, vT))
    e("buffer_load_dword v%d, v%d, s[%d:%d], 0 offen" % (vT + 1, vT, SR_B, SR_B + 3))
    e("buffer_load_dword v%d, v%d, s[%d:%d], 0 offen" % (vT + 2, vT, SR_C, SR_C + 3))
    srd(SR_B, "Cr", 512 * 256)
    srd(SR_C, "Ci", 512 * 256)
    e("buffer_load_dword v%d, v%d, s[%d:%d], 0 offen" % (vT + 3, vT, SR_B, SR_B + 3))
    e("buffer_load_dword v%d, v%d, s[%d:%d], 0 offen" % (vT + 4, vT, SR_C, SR_C + 3))
    srd(SR_B, "logdt", 1024)
    e("s_lshl_b32 s%d, s%d, 1" % (sT0, sT1))
    e("v_mov_b32 v%d, s%d" % (vT + 5, sT0))
    e("buffer_load_ushort v%d, v%d, s[%d:%d], 0 offen" % (vT + 5, vT + 5, SR_B, SR_B + 3))
    e("s_waitcnt lgkmcnt(0)")
    for i in range(4):
        w = 92 + i // 2
        if i % 2 == 0:
            e("s_lshl_b32 s%d, s%d, 16" % (80 + i, w))
        else:
            e("s_and_b32 s%d, s%d, 0xffff0000" % (80 + i, w))
    e("s_waitcnt vmcnt(0)")
    e("v_lshlrev_b32 v%d, 16, v%d" % (vT + 5, vT + 5))
    e("v_mul_f32 v%d, %s, v%d" % (vT + 5, LOG2E, vT + 5))
    e("v_exp_f32 v%d, v%d" % (vT + 5, vT + 5))
    e("s_nop 0")
    rb_scalar(vT + 5)
    e("v_lshlrev_b32 v%d, 5, v%d" % (vT + 6, vLANE))
    e("v_add_u32 v%d, %d, v%d" % (vT + 6, MC, vT + 6))
    e("s_lshl_b32 s%d, s%d, 11" % (sT0, sWAVE))
    e("v_add_u32 v%d, s%d, v%d" % (vT + 6, sT0, vT + 6))
    for m in range(2):
        ext = ("v_lshlrev_b32 v%d, 16, v%d" if m == 0 else "v_and_b32 v%d, 0xffff0000, v%d")
        e(ext % (vT + 8, vT + 1))
        e(ext % (vT + 9, vT + 2))
        e(ext % (vT + 10, vT + 3))
        e(ext % (vT + 11, vT + 4))
        e("v_mul_f32 v%d, %s, v%d" % (vT + 8, LOG2E, vT + 8))
        e("v_exp_f32 v%d, v%d" % (vT + 8, vT + 8))
        e("s_nop 0")
        rb_scalar(vT + 8)
        e("v_mul_f32 v%d, v%d, v%d" % (vT + 8, vT + 8, vT + 5))
        e("v_mul_f32 v%d, 0xbfb8aa3b, v%d" % (vT + 8, vT + 8))
        e("v_mul_f32 v%d, v%d, v%d" % (vT + 9, vT + 9, vT + 5))
        e("v_mul_f32 v%d, 0.15915494, v%d" % (vT + 9, vT + 9))
        e("v_mul_f32 v%d, v%d, v%d" % (vT + 10, vT + 10, vT + 5))
        e("v_mul_f32 v%d, v%d, v%d" % (vT + 11, vT + 11, vT + 5))
        e("ds_write_b128 v%d, v[%d:%d] offset:%d" % (vT + 6, vT + 8, vT + 11, 16 * m))
    vPB, vPA = vT + 1, vT + 2
    e("v_and_b32 v%d, 31, v%d" % (vT + 3, vLANE))
    e("v_lshlrev_b32 v%d, 3, v%d" % (vPB, vT + 3))
    e("v_cvt_f32_u32 v%d, v%d" % (vPB, vPB))
    hi = [0] * 32
    for r in range(8): hi[r] = r
    for r in range(4): hi[8 + r] = 256 + 2 * r
    for r in range(4): hi[12 + r] = 512 + 4 * (r & 1) + 256 * (r >> 1)
    for r in range(4): hi[16 + r] = 1024 + 256 * r
    hi[20] = 2048
    e("v_mov_b32 v%d, 0" % vPA)
    for r in range(1, 21):
        e("v_cmp_eq_u32 vcc, %d, v%d" % (r, vT + 3))
        e("v_mov_b32 v%d, %d" % (vT + 4, hi[r]))
        e("s_nop 0")
        e("v_cndmask_b32 v%d, v%d, v%d, vcc" % (vPA, vPA, vT + 4))
    e("v_cvt_f32_u32 v%d, v%d" % (vPA, vPA))
    e("v_lshrrev_b32 v%d, 5, v%d" % (vT + 4, vLANE))
    e("v_lshlrev_b32 v%d, 10, v%d" % (vT + 4, vT + 4))
    e("v_add_u32 v%d, %d, v%d" % (vT + 4, MC, vT + 4))
    e("v_add_u32 v%d, s%d, v%d" % (vT + 4, sT0, vT + 4))
    vMCA = vT + 4
    KACC = ACC
    AH, AL, BH, BL = FR, FR + 4, FR + 8, FR + 12
    MCR = FR + 16
    W = vT + 6
    for i in range(16):
        e("v_mov_b32 v%d, 0" % (KACC + i))
    e("s_waitcnt lgkmcnt(0)")
    for s in range(16):
        for q in range(4):
            e("ds_read_b128 v[%d:%d], v%d offset:%d" % (MCR + 4 * q, MCR + 4 * q + 3, vMCA, 64 * s + 16 * q))
        e("s_waitcnt lgkmcnt(0)")
        for q in range(4):
            ar, ai, cr, ci = MCR + 4 * q, MCR + 4 * q + 1, MCR + 4 * q + 2, MCR + 4 * q + 3
            e("v_mul_f32 v%d, v%d, v%d" % (W, ar, vPB))
            e("v_mul_f32 v%d, v%d, v%d" % (W + 1, ai, vPB))
            e("v_exp_f32 v%d, v%d" % (W, W))
            e("v_fract_f32 v%d, v%d" % (W + 1, W + 1))
            e("v_mul_f32 v%d, v%d, v%d" % (W + 4, ar, vPA))
            e("v_mul_f32 v%d, v%d, v%d" % (W + 5, ai, vPA))
            e("v_cos_f32 v%d, v%d" % (W + 2, W + 1))
            e("v_sin_f32 v%d, v%d" % (W + 3, W + 1))
            e("v_exp_f32 v%d, v%d" % (W + 4, W + 4))
            e("v_fract_f32 v%d, v%d" % (W + 5, W + 5))
            e("v_mul_f32 v%d, v%d, v%d" % (W + 2, W, W + 2))
            e("v_mul_f32 v%d, v%d, v%d" % (W + 3, W, W + 3))
            e("v_cos_f32 v%d, v%d" % (W + 6, W + 5))
            e("v_sin_f32 v%d, v%d" % (W + 7, W + 5))
            e("v_cvt_pk_bf16_f32 v%d, v%d, v%d" % (BH + q, W + 2, W + 3))
            e("v_lshlrev_b32 v%d, 16, v%d" % (W + 8, BH + q))
            e("v_and_b32 v%d, 0xffff0000, v%d" % (W + 9, BH + q))
            e("v_sub_f32 v%d, v%d, v%d" % (W + 2, W + 2, W + 8))
            e("v_sub_f32 v%d, v%d, v%d" % (W + 3, W + 3, W + 9))
            e("v_cvt_pk_bf16_f32 v%d, v%d, v%d" % (BL + q, W + 2, W + 3))
            e("v_mul_f32 v%d, v%d, v%d" % (W + 6, W + 4, W + 6))
            e("v_mul_f32 v%d, v%d, v%d" % (W + 7, W + 4, W + 7))
            e("v_mul_f32 v%d, v%d, v%d" % (W + 8, cr, W + 6))
            e("v_fma_f32 v%d, -v%d, v%d, v%d" % (W + 8, ci, W + 7, W + 8))
            e("v_mul_f32 v%d, v%d, v%d" % (W + 9, cr, W + 7))
            e("v_fma_f32 v%d, v%d, v%d, v%d" % (W + 9, ci, W + 6, W + 9))
            e("v_xor_b32 v%d, 0x80000000, v%d" % (W + 9, W + 9))
            e("v_cvt_pk_bf16_f32 v%d, v%d, v%d" % (AH + q, W + 8, W + 9))
            e("v_lshlrev_b32 v%d, 16, v%d" % (W + 10, AH + q))
            e("v_and_b32 v%d, 0xffff0000, v%d" % (W + 11, AH + q))
            e("v_sub_f32 v%d, v%d, v%d" % (W + 8, W + 8, W + 10))
            e("v_sub_f32 v%d, v%d, v%d" % (W + 9, W + 9, W + 11))
            e("v_cvt_pk_bf16_f32 v%d, v%d, v%d" % (AL + q, W + 8, W + 9))
        e("s_nop 1")
        for (a, b) in ((AH, BH), (AH, BL), (AL, BH)):
            e("v_mfma_f32_32x32x16_bf16 v[%d:%d], v[%d:%d], v[%d:%d], v[%d:%d]" % (
                KACC, KACC + 15, a, a + 3, b, b + 3, KACC, KACC + 15))
    e("s_nop 15")
    e("s_nop 3")
    c("T table")
    e("v_and_b32 v%d, 31, v%d" % (W, vLANE))
    e("v_lshlrev_b32 v%d, 4, v%d" % (W, W))
    e("v_add_u32 v%d, %d, v%d" % (W, TT, W))
    e("s_mul_i32 s%d, s%d, %d" % (sT0, sWAVE, TTS))
    e("v_add_u32 v%d, s%d, v%d" % (W, sT0, W))
    e("v_cmp_lt_u32 vcc, 31, v%d" % vLANE)
    for v in range(12):
        g, q = v // 4, v % 4
        r0, r1 = 8 * g + q, 8 * g + 4 + q
        h0 = hi[r0] if r0 <= 20 else 2052
        h1 = hi[r1] if r1 <= 20 else 2052
        e("v_mov_b32 v%d, %d" % (W + 1, 2 * h0))
        e("v_mov_b32 v%d, %d" % (W + 2, 2 * h1))
        e("v_cndmask_b32 v%d, v%d, v%d, vcc" % (W + 1, W + 1, W + 2))
        e("v_add_u32 v%d, v%d, v%d" % (W + 1, W + 1, W))
        e("v_add_f32 v%d, v%d, v%d" % (W + 3, KACC + v, KACC + v))
        e("v_cvt_pk_bf16_f32 v%d, v%d, v%d" % (W + 3, W + 3, W + 3))
        e("ds_write_b16 v%d, v%d" % (W + 1, W + 3))
    e("s_waitcnt lgkmcnt(0)")
    c("gather K")
    e("v_lshrrev_b32 v%d, 2, v%d" % (W + 10, vLANE))
    e("v_mul_u32_u24 v%d, 80, v%d" % (W + 10, W + 10))
    e("v_and_b32 v%d, 3, v%d" % (W + 11, vLANE))
    e("v_lshlrev_b32 v%d, 4, v%d" % (W + 11, W + 11))
    e("v_add3_u32 v%d, v%d, v%d, s%d" % (W + 10, W + 10, W + 11, sREG))
    e("v_mov_b32 v%d, %d" % (W + 11, TT))
    e("v_add_u32 v%d, s%d, v%d" % (W + 11, sT0, W + 11))
    for t in range(4):
        for d in range(4):
            for hh in range(2):
                el = 7 - 2 * d - hh
                e("v_lshlrev_b32 v%d, 3, v%d" % (W, vLANE))
                e("v_add_u32 v%d, %d, v%d" % (W, 512 * t + el, W))
                e("v_cvt_f32_u32 v%d, v%d" % (W, W))
                e("v_cvt_pk_bf16_f32 v%d, v%d, v%d" % (W, W, W))
                e("v_and_b32 v%d, 0xffff0000, v%d" % (W, W))
                e("v_cvt_u32_f32 v%d, v%d" % (W, W))
                e("v_lshl_add_u32 v%d, v%d, 1, v%d" % (W, W, W + 11))
                e("ds_read_u16 v%d, v%d" % (MCR + 2 * d + hh, W))
        e("s_waitcnt lgkmcnt(0)")
        for d in range(4):
            e("v_lshl_or_b32 v%d, v%d, 16, v%d" % (W + 4 + d, MCR + 2 * d + 1, MCR + 2 * d))
        e("ds_write_b128 v%d, v[%d:%d] offset:%d" % (W + 10, W + 4, W + 7, KB + 80 * (31 + 16 * t)))
    e("s_waitcnt lgkmcnt(0)")
    stamp()
    e("s_barrier")
    stamp()
    e("s_waitcnt vmcnt(0)")
    for g in range(8):
        xcopy_writes(g, PX + 2 * g, PX + 2 * g + 1)
    e("s_waitcnt lgkmcnt(0)")
    stamp()
    e("s_barrier")
    stamp()
    if DBGK:
        out_offset()
        e("v_xor_b32 v%d, 7, v%d" % (vT + 10, vLANE))
        e("v_and_b32 v%d, 31, v%d" % (vT + 10, vT + 10))
        e("v_lshlrev_b32 v%d, 1, v%d" % (vT + 10, vT + 10))
        e("v_lshrrev_b32 v%d, 5, v%d" % (vT + 11, vLANE))
        e("s_lshl_b32 s%d, s%d, 4" % (sT0, sWAVE))
        e("v_add_u32 v%d, s%d, v%d" % (vT + 11, sT0, vT + 11))
        e("v_mul_u32_u24 v%d, 80, v%d" % (vT + 11, vT + 11))
        e("v_add_u32 v%d, v%d, v%d" % (vT + 10, vT + 10, vT + 11))
        e("v_add_u32 v%d, %d, v%d" % (vT + 11, 2 * REGION, vT + 10))
        for g in range(8):
            for ch in range(4):
                va = vT + 10 if ch < 2 else vT + 11
                e("ds_read_u16 v%d, v%d offset:%d" % (vT + ch, va, (ch & 1) * REGION + KB + 80 * 31 + 160 * g))
            e("s_waitcnt lgkmcnt(0)")
            e("v_lshl_or_b32 v%d, v%d, 16, v%d" % (vT + 8, vT + 1, vT + 0))
            e("v_lshl_or_b32 v%d, v%d, 16, v%d" % (vT + 9, vT + 3, vT + 2))
            store_out(g, vT + 8)
        e("s_branch L_end")
        return
    conv()
    out_offset()
    for g in range(8):
        read_y(g, vT + 0)
        e("s_waitcnt lgkmcnt(0)")
        for ch in range(4):
            e("v_lshlrev_b32 v%d, 16, v%d" % (vT + ch, vT + ch))
        unpack4(PX + 2 * g, PX + 2 * g + 1, vT + 4)
        for ch in range(4):
            e("v_mul_f32 v%d, s%d, v%d" % (vT + 4 + ch, 80 + ch, vT + 4 + ch))
        round4(vT + 4)
        for ch in range(4):
            e("v_add_f32 v%d, v%d, v%d" % (vT + ch, vT + ch, vT + 4 + ch))
        e("v_cvt_pk_bf16_f32 v%d, v%d, v%d" % (vT + 8, vT + 0, vT + 1))
        e("v_cvt_pk_bf16_f32 v%d, v%d, v%d" % (vT + 9, vT + 2, vT + 3))
        store_out(g, vT + 8)
    stamp()
    stamp_flush(0)
    e("s_branch L_end")

def main():
    hdr = open("cdna_kernels/%s.s.ref" % NAME).read().split("\n")
    comments = [l for l in hdr if l.startswith(";") and "@launch" not in l]
    for l in comments: out.append(l)
    header()
    common_prologue()
    e("s_cmp_eq_u32 s%d, 0" % sPART)
    e("s_cbranch_scc1 L_A")
    path_B()
    path_A()
    lab("L_end")
    footer(256)
    open("cdna_kernels/%s.s" % NAME, "w").write("\n".join(out) + "\n")
    print("lines", len(out))

main()
```

```python
import sys
NAME = "concat_heads__ssm_conv_s4d__ssm_conv_h3__prompt"
out = []
def e(x): out.append("    " + x)
def lab(x): out.append(x + ":")
LOG2E = "0x3fb8aa3b"
P = {n: 32 + 2 * i for i, n in enumerate(["u","logA","Aimag","Cr","Ci","logdt","Dskip","q","k","v","shk","ssmk","ssmD","out","dbg","ws"])}
def srd(dst, ptr, nbytes, off=0):
    if off:
        e("s_add_u32 s%d, s%d, 0x%x" % (dst, P[ptr], off)); e("s_addc_u32 s%d, s%d, 0" % (dst + 1, P[ptr] + 1))
        e("s_and_b32 s%d, s%d, 0xffff" % (dst + 1, dst + 1))
    else:
        e("s_mov_b32 s%d, s%d" % (dst, P[ptr])); e("s_and_b32 s%d, s%d, 0xffff" % (dst + 1, P[ptr] + 1))
    e("s_mov_b32 s%d, 0x%x" % (dst + 2, nbytes)); e("s_mov_b32 s%d, 0x00020000" % (dst + 3))
def kbegin(k):
    out.append(".text"); out.append(".globl %s" % k); out.append(".p2align 8"); out.append(".type %s,@function" % k); out.append(k + ":")
def kend(k, nv):
    out.append("s_endpgm"); out.append('.section .rodata,"a"'); out.append(".p2align 6"); out.append(".amdhsa_kernel " + k)
    for l in ["next_free_vgpr %d" % nv, "next_free_sgpr 102", "accum_offset %d" % nv, "group_segment_fixed_size 0", "kernarg_size 128",
              "user_sgpr_count 2", "user_sgpr_kernarg_segment_ptr 1", "system_sgpr_workgroup_id_x 1"]: out.append("  .amdhsa_" + l)
    out.append(".end_amdhsa_kernel")
WS_X, WS_Q, WS_K = 0, 4 << 20, 6 << 20
def ldptrs():
    e("s_load_dwordx16 s[32:47], s[0:1], 0"); e("s_load_dwordx16 s[48:63], s[0:1], 64")

RS = 528
def k1():
    K = "prep_kernel"
    kbegin(K)
    e("s_cmp_ge_u32 s2, 448"); e("s_cbranch_scc1 K1_end")
    ldptrs()
    e("s_cmp_ge_u32 s2, 192"); e("s_cbranch_scc1 K1_kgen")
    e("s_and_b32 s4, s2, 7"); e("s_lshr_b32 s5, s2, 3"); e("s_lshr_b32 s6, s5, 3"); e("s_and_b32 s5, s5, 7")
    e("v_lshrrev_b32 v1, 3, v0"); e("v_and_b32 v2, 7, v0")
    e("s_lshl_b32 s7, s5, 18")
    e("s_lshl_b32 s24, s4, 7"); e("s_add_u32 s7, s7, s24")
    e("v_lshlrev_b32 v3, 10, v1"); e("v_lshl_add_u32 v3, v2, 4, v3"); e("v_add_u32 v3, s7, v3")
    e("v_mul_u32_u24 v4, %d, v2" % (8 * RS)); e("v_lshl_add_u32 v4, v1, 1, v4")
    e("v_mul_u32_u24 v5, %d, v1" % RS); e("v_lshl_add_u32 v5, v2, 6, v5")
    e("s_lshl_b32 s24, s4, 18"); e("s_lshl_b32 s25, s5, 9"); e("s_add_u32 s24, s24, s25")
    e("v_lshlrev_b32 v6, 12, v1"); e("v_lshl_add_u32 v6, v2, 6, v6"); e("v_add_u32 v6, s24, v6")
    e("s_waitcnt lgkmcnt(0)")
    e("s_cmp_eq_u32 s6, 2"); e("s_cbranch_scc1 K1_kv")
    e("s_cmp_eq_u32 s6, 0")
    e("s_cselect_b32 s8, s%d, s%d" % (P["u"], P["q"])); e("s_cselect_b32 s9, s%d, s%d" % (P["u"] + 1, P["q"] + 1))
    e("s_and_b32 s9, s9, 0xffff"); e("s_mov_b32 s10, 0x200000"); e("s_mov_b32 s11, 0x00020000")
    e("s_cmp_eq_u32 s6, 0"); e("s_cselect_b32 s24, 0, 0x%x" % WS_Q)
    e("s_add_u32 s12, s%d, s24" % P["ws"]); e("s_addc_u32 s13, s%d, 0" % (P["ws"] + 1)); e("s_and_b32 s13, s13, 0xffff")
    e("s_mov_b32 s14, 0x200000"); e("s_mov_b32 s15, 0x00020000")
    for i in range(4):
        e("s_mov_b32 s24, %d" % (65536 * i)); e("buffer_load_dwordx4 v[%d:%d], v3, s[8:11], s24 offen" % (16 + 4 * i, 19 + 4 * i))
    for i in range(4):
        e("s_waitcnt vmcnt(%d)" % (3 - i))
        for j in range(8):
            e("%s v4, v%d offset:%d" % ("ds_write_b16" if j % 2 == 0 else "ds_write_b16_d16_hi", 16 + 4 * i + j // 2, j * RS + 128 * i))
    e("s_waitcnt lgkmcnt(0)"); e("s_barrier")
    for i in range(4): e("ds_read_b128 v[%d:%d], v5 offset:%d" % (16 + 4 * i, 19 + 4 * i, 16 * i))
    for i in range(4):
        e("s_waitcnt lgkmcnt(%d)" % (3 - i)); e("buffer_store_dwordx4 v[%d:%d], v6, s[12:15], 0 offen offset:%d" % (16 + 4 * i, 19 + 4 * i, 16 * i))
    e("s_branch K1_end")
    lab("K1_kv")
    VOFF = 64 * RS
    srd(8, "k", 0x200000); srd(12, "v", 0x200000); srd(16, "shk", 4096); srd(20, "ws", 0x200000, WS_X + (2 << 20))
    for i in range(4):
        e("s_mov_b32 s24, %d" % (65536 * i)); e("buffer_load_dwordx4 v[%d:%d], v3, s[8:11], s24 offen" % (16 + 4 * i, 19 + 4 * i))
    for i in range(4):
        e("s_mov_b32 s24, %d" % (65536 * i)); e("buffer_load_dwordx4 v[%d:%d], v3, s[12:15], s24 offen" % (32 + 4 * i, 35 + 4 * i))
    e("v_subrev_u32 v7, 3072, v3")
    e("buffer_load_dwordx4 v[48:51], v7, s[8:11], 0 offen")
    e("s_lshl_b32 s24, s4, 9"); e("v_lshlrev_b32 v8, 3, v1"); e("v_add_u32 v8, s24, v8")
    e("buffer_load_dwordx2 v[52:53], v8, s[16:19], 0 offen")
    for i in range(4):
        e("s_waitcnt vmcnt(%d)" % (9 - i))
        for j in range(8):
            e("%s v4, v%d offset:%d" % ("ds_write_b16" if j % 2 == 0 else "ds_write_b16_d16_hi", 16 + 4 * i + j // 2, j * RS + 128 * i + 16))
    for i in range(4):
        e("s_waitcnt vmcnt(%d)" % (5 - i))
        for j in range(8):
            e("%s v4, v%d offset:%d" % ("ds_write_b16" if j % 2 == 0 else "ds_write_b16_d16_hi", 32 + 4 * i + j // 2, VOFF + j * RS + 128 * i))
    e("s_waitcnt vmcnt(0)")
    e("v_cmp_gt_u32 vcc, 3, v1"); e("s_and_saveexec_b64 s[26:27], vcc")
    for j in range(8):
        e("%s v4, v%d offset:%d" % ("ds_write_b16" if j % 2 == 0 else "ds_write_b16_d16_hi", 48 + j // 2, j * RS + 10))
    e("s_mov_b64 exec, s[26:27]")
    e("s_waitcnt lgkmcnt(0)"); e("s_barrier")
    for t in range(4): e(("v_lshlrev_b32 v%d, 16, v%d" if t % 2 == 0 else "v_and_b32 v%d, 0xffff0000, v%d") % (54 + t, 52 + t // 2))
    for pc in range(4):
        e("ds_read_b128 v[16:19], v5 offset:%d" % (16 * pc + 16))
        e("ds_read_b64 v[20:21], v5 offset:%d" % (16 * pc + 8))
        e("ds_read_b128 v[24:27], v5 offset:%d" % (VOFF + 16 * pc))
        e("s_waitcnt lgkmcnt(0)")
        src = [(20, 1), (21, 0), (21, 1)] + [(16 + j // 2, j % 2) for j in range(8)]
        for n, (r, hh) in enumerate(src): e(("v_lshlrev_b32 v%d, 16, v%d" if hh == 0 else "v_and_b32 v%d, 0xffff0000, v%d") % (30 + n, r))
        for j in range(8): e(("v_lshlrev_b32 v%d, 16, v%d" if j % 2 == 0 else "v_and_b32 v%d, 0xffff0000, v%d") % (41 + j, 24 + j // 2))
        def rnd(a, b):
            e("v_cvt_pk_bf16_f32 v60, v%d, v%d" % (a, b)); e("v_lshlrev_b32 v%d, 16, v60" % a); e("v_and_b32 v%d, 0xffff0000, v60" % b)
        for j0 in range(0, 8, 2):
            for t in range(4):
                e("v_mul_f32 v58, v%d, v%d" % (57 - t, 30 + j0 + t)); e("v_mul_f32 v59, v%d, v%d" % (57 - t, 31 + j0 + t))
                rnd(58, 59)
                if t == 0: e("v_mov_b32 v61, v58"); e("v_mov_b32 v62, v59")
                else:
                    e("v_add_f32 v61, v61, v58"); e("v_add_f32 v62, v62, v59"); rnd(61, 62)
            e("v_mul_f32 v61, v61, v%d" % (41 + j0)); e("v_mul_f32 v62, v62, v%d" % (42 + j0))
            e("v_cvt_pk_bf16_f32 v%d, v61, v62" % (64 + j0 // 2))
        e("buffer_store_dwordx4 v[64:67], v6, s[20:23], 0 offen offset:%d" % (16 * pc))
        e("s_nop 1")
    e("s_branch K1_end")
    lab("K1_kgen")
    e("v_lshrrev_b32 v1, 6, v0"); e("v_and_b32 v0, 63, v0"); e("s_nop 1"); e("v_readfirstlane_b32 s3, v1"); e("s_nop 3")
    e("s_sub_u32 s4, s2, 192"); e("s_lshl_b32 s4, s4, 1"); e("s_add_u32 s4, s4, s3"); e("s_cmp_ge_u32 s3, 2"); e("s_cbranch_scc1 K1_end")
    e("s_mul_i32 s5, s3, 6656")
    e("s_waitcnt lgkmcnt(0)")
    srd(8, "logA", 131072); srd(12, "Aimag", 131072); srd(16, "Cr", 131072); srd(20, "Ci", 131072)
    e("s_lshl_b32 s7, s4, 8"); e("v_lshlrev_b32 v10, 2, v0"); e("v_add_u32 v10, s7, v10")
    for i in range(4): e("buffer_load_dword v%d, v10, s[%d:%d], 0 offen" % (11 + i, 8 + 4 * i, 11 + 4 * i))
    srd(8, "logdt", 1024); e("s_lshl_b32 s7, s4, 1"); e("v_mov_b32 v15, s7"); e("buffer_load_ushort v15, v15, s[8:11], 0 offen")
    e("s_waitcnt vmcnt(0)")
    e("v_lshlrev_b32 v15, 16, v15"); e("v_mul_f32 v15, %s, v15" % LOG2E); e("v_exp_f32 v15, v15"); e("s_nop 0")
    e("v_cvt_pk_bf16_f32 v15, v15, v15"); e("v_and_b32 v15, 0xffff0000, v15")
    e("v_lshlrev_b32 v16, 5, v0"); e("v_add_u32 v16, s5, v16")
    for m in range(2):
        ext = ("v_lshlrev_b32 v%d, 16, v%d" if m == 0 else "v_and_b32 v%d, 0xffff0000, v%d")
        for i in range(4): e(ext % (18 + i, 11 + i))
        e("v_mul_f32 v18, %s, v18" % LOG2E); e("v_exp_f32 v18, v18"); e("s_nop 0")
        e("v_cvt_pk_bf16_f32 v18, v18, v18"); e("v_and_b32 v18, 0xffff0000, v18")
        e("v_mul_f32 v18, v18, v15"); e("v_mul_f32 v18, 0xbfb8aa3b, v18")
        e("v_mul_f32 v19, v19, v15"); e("v_mul_f32 v19, 0.15915494, v19"); e("v_mul_f32 v20, v20, v15"); e("v_mul_f32 v21, v21, v15")
        e("ds_write_b128 v16, v[18:21] offset:%d" % (16 * m))
    hi = [0] * 32
    for r in range(8): hi[r] = r
    for r in range(4): hi[8 + r] = 256 + 2 * r; hi[12 + r] = 512 + 4 * (r & 1) + 256 * (r >> 1); hi[16 + r] = 1024 + 256 * r
    hi[20] = 2048
    e("v_and_b32 v13, 31, v0"); e("v_lshlrev_b32 v11, 3, v13"); e("v_cvt_f32_u32 v11, v11"); e("v_mov_b32 v12, 0")
    for r in range(1, 21):
        e("v_cmp_eq_u32 vcc, %d, v13" % r); e("v_mov_b32 v14, %d" % hi[r]); e("s_nop 0"); e("v_cndmask_b32 v12, v12, v14, vcc")
    e("v_cvt_f32_u32 v12, v12")
    e("v_lshrrev_b32 v14, 5, v0"); e("v_lshlrev_b32 v14, 10, v14"); e("v_add_u32 v14, s5, v14")
    KACC, AH, AL, BH, BL, MCR, W = 64, 80, 84, 88, 92, 96, 16
    for i in range(16): e("v_mov_b32 v%d, 0" % (KACC + i))
    e("s_mov_b32 s6, 0"); e("s_waitcnt lgkmcnt(0)")
    lab("K1_loop")
    for q in range(4): e("ds_read_b128 v[%d:%d], v14 offset:%d" % (MCR + 4 * q, MCR + 4 * q + 3, 16 * q))
    e("v_add_u32 v14, 64, v14"); e("s_waitcnt lgkmcnt(0)")
    for q in range(4):
        ar, ai, cr, ci = MCR + 4 * q, MCR + 4 * q + 1, MCR + 4 * q + 2, MCR + 4 * q + 3
        for x in ["v_mul_f32 v%d, v%d, v11" % (W, ar), "v_mul_f32 v%d, v%d, v11" % (W + 1, ai), "v_exp_f32 v%d, v%d" % (W, W), "v_fract_f32 v%d, v%d" % (W + 1, W + 1),
                  "v_mul_f32 v%d, v%d, v12" % (W + 4, ar), "v_mul_f32 v%d, v%d, v12" % (W + 5, ai), "v_cos_f32 v%d, v%d" % (W + 2, W + 1), "v_sin_f32 v%d, v%d" % (W + 3, W + 1),
                  "v_exp_f32 v%d, v%d" % (W + 4, W + 4), "v_fract_f32 v%d, v%d" % (W + 5, W + 5), "v_mul_f32 v%d, v%d, v%d" % (W + 2, W, W + 2), "v_mul_f32 v%d, v%d, v%d" % (W + 3, W, W + 3),
                  "v_cos_f32 v%d, v%d" % (W + 6, W + 5), "v_sin_f32 v%d, v%d" % (W + 7, W + 5), "v_cvt_pk_bf16_f32 v%d, v%d, v%d" % (BH + q, W + 2, W + 3),
                  "v_lshlrev_b32 v%d, 16, v%d" % (W + 8, BH + q), "v_and_b32 v%d, 0xffff0000, v%d" % (W + 9, BH + q), "v_sub_f32 v%d, v%d, v%d" % (W + 2, W + 2, W + 8),
                  "v_sub_f32 v%d, v%d, v%d" % (W + 3, W + 3, W + 9), "v_cvt_pk_bf16_f32 v%d, v%d, v%d" % (BL + q, W + 2, W + 3),
                  "v_mul_f32 v%d, v%d, v%d" % (W + 6, W + 4, W + 6), "v_mul_f32 v%d, v%d, v%d" % (W + 7, W + 4, W + 7), "v_mul_f32 v%d, v%d, v%d" % (W + 8, cr, W + 6),
                  "v_fma_f32 v%d, -v%d, v%d, v%d" % (W + 8, ci, W + 7, W + 8), "v_mul_f32 v%d, v%d, v%d" % (W + 9, cr, W + 7), "v_fma_f32 v%d, v%d, v%d, v%d" % (W + 9, ci, W + 6, W + 9),
                  "v_xor_b32 v%d, 0x80000000, v%d" % (W + 9, W + 9), "v_cvt_pk_bf16_f32 v%d, v%d, v%d" % (AH + q, W + 8, W + 9), "v_lshlrev_b32 v%d, 16, v%d" % (W + 10, AH + q),
                  "v_and_b32 v%d, 0xffff0000, v%d" % (W + 11, AH + q), "v_sub_f32 v%d, v%d, v%d" % (W + 8, W + 8, W + 10), "v_sub_f32 v%d, v%d, v%d" % (W + 9, W + 9, W + 11),
                  "v_cvt_pk_bf16_f32 v%d, v%d, v%d" % (AL + q, W + 8, W + 9)]: e(x)
    e("s_nop 1")
    for (a, b) in ((AH, BH), (AH, BL), (AL, BH)):
        e("v_mfma_f32_32x32x16_bf16 v[%d:%d], v[%d:%d], v[%d:%d], v[%d:%d]" % (KACC, KACC + 15, a, a + 3, b, b + 3, KACC, KACC + 15))
    e("s_add_u32 s6, s6, 1"); e("s_cmp_lt_u32 s6, 16"); e("s_cbranch_scc1 K1_loop")
    e("s_nop 15"); e("s_nop 3")
    e("v_and_b32 v16, 31, v0"); e("v_lshlrev_b32 v16, 4, v16"); e("v_add_u32 v16, s5, v16"); e("v_add_u32 v16, 2048, v16")
    e("v_cmp_lt_u32 vcc, 31, v0")
    for v in range(12):
        g, q = v // 4, v % 4
        r0, r1 = 8 * g + q, 8 * g + 4 + q
        e("v_mov_b32 v17, %d" % (2 * (hi[r0] if r0 <= 20 else 2052))); e("v_mov_b32 v18, %d" % (2 * (hi[r1] if r1 <= 20 else 2052)))
        e("v_cndmask_b32 v17, v17, v18, vcc"); e("v_add_u32 v17, v17, v16")
        e("v_add_f32 v19, v%d, v%d" % (KACC + v, KACC + v)); e("v_cvt_pk_bf16_f32 v19, v19, v19"); e("ds_write_b16 v17, v19")
    e("s_waitcnt lgkmcnt(0)")
    srd(8, "ws", 0x200000, WS_K)
    e("s_lshl_b32 s7, s4, 12"); e("v_lshlrev_b32 v27, 4, v0"); e("v_add_u32 v27, s7, v27")
    e("s_add_u32 s7, s5, 2048"); e("s_mov_b32 s6, 0"); e("v_lshlrev_b32 v28, 3, v0")
    lab("K1_g")
    for j in range(8):
        e("v_add_u32 v16, %d, v28" % j); e("v_cvt_f32_u32 v16, v16"); e("v_cvt_pk_bf16_f32 v16, v16, v16"); e("v_and_b32 v16, 0xffff0000, v16")
        e("v_cvt_u32_f32 v16, v16"); e("v_lshl_add_u32 v16, v16, 1, s7"); e("ds_read_u16 v%d, v16" % (MCR + j))
    e("s_waitcnt lgkmcnt(0)")
    for d in range(4): e("v_lshl_or_b32 v%d, v%d, 16, v%d" % (20 + d, MCR + 2 * d + 1, MCR + 2 * d))
    e("buffer_store_dwordx4 v[20:23], v27, s[8:11], 0 offen")
    e("v_add_u32 v27, 1024, v27"); e("v_add_u32 v28, 512, v28")
    e("s_add_u32 s6, s6, 1"); e("s_cmp_lt_u32 s6, 4"); e("s_cbranch_scc1 K1_g")
    lab("K1_end")
    kend(K, 128)

CS, XC = 4416, 0
KB = 4 * CS; YT = KB; REGION = KB + 95 * 80
def k2():
    K = NAME + "_kernel"
    kbegin(K)
    e("s_cmp_ge_u32 s2, 256"); e("s_cbranch_scc1 K2_end")
    ldptrs()
    e("s_and_b32 s7, s2, 7"); e("s_lshr_b32 s24, s2, 3"); e("s_and_b32 s4, s24, 15"); e("s_lshl_b32 s4, s4, 2"); e("s_lshl_b32 s7, s7, 6")
    e("s_add_u32 s4, s4, s7"); e("s_lshr_b32 s5, s24, 4")
    e("v_lshrrev_b32 v1, 6, v0"); e("v_and_b32 v0, 63, v0"); e("s_nop 1"); e("v_readfirstlane_b32 s3, v1"); e("s_nop 3")
    e("s_mul_i32 s6, s3, %d" % REGION); e("s_add_u32 s25, s4, s3")
    e("s_waitcnt lgkmcnt(0)")
    srd(8, "ws", 0x400000, WS_X); srd(16, "ws", 0x200000, WS_Q)
    e("s_cmp_eq_u32 s5, 0")
    e("s_cselect_b32 s12, s%d, s%d" % (P["ws"], P["ssmk"])); e("s_cselect_b32 s13, s%d, s%d" % (P["ws"] + 1, P["ssmk"] + 1))
    e("s_cselect_b32 s7, 0x%x, 0" % WS_K); e("s_add_u32 s12, s12, s7"); e("s_addc_u32 s13, s13, 0"); e("s_and_b32 s13, s13, 0xffff")
    e("s_mov_b32 s14, 0x200000"); e("s_mov_b32 s15, 0x00020000")
    srd(20, "out", 2048 * 2048)
    e("s_cmp_eq_u32 s5, 0")
    e("s_cselect_b32 s28, s%d, s%d" % (P["Dskip"], P["ssmD"])); e("s_cselect_b32 s29, s%d, s%d" % (P["Dskip"] + 1, P["ssmD"] + 1))
    e("s_lshl_b32 s7, s25, 1"); e("s_and_b32 s7, s7, -4"); e("s_add_u32 s28, s28, s7"); e("s_addc_u32 s29, s29, 0"); e("s_load_dword s80, s[28:29], 0")
    e("s_lshl_b32 s7, s25, 12"); e("v_lshlrev_b32 v10, 4, v0"); e("v_add_u32 v10, s7, v10")
    e("s_lshl_b32 s7, s5, 21"); e("v_add_u32 v11, s7, v10")
    for t in range(4): e("buffer_load_dwordx4 v[%d:%d], v11, s[8:11], 0 offen offset:%d" % (36 + 4 * t, 39 + 4 * t, 1024 * t))
    for t in range(4): e("buffer_load_dwordx4 v[%d:%d], v10, s[12:15], 0 offen offset:%d" % (100 + 4 * t, 103 + 4 * t, 1024 * t))
    for i in range(4): e("v_mov_b32 v%d, 0" % (12 + i))
    e("v_lshlrev_b32 v16, 4, v0"); e("v_add_u32 v16, s6, v16")
    for i in range(3): e("ds_write_b128 v16, v[12:15] offset:%d" % (KB + 1024 * i))
    e("v_mov_b32 v17, 0x33333334"); e("v_mul_hi_u32 v17, v17, v0"); e("v_mul_u32_u24 v18, 5, v17"); e("v_sub_u32 v18, v0, v18")
    e("v_mul_u32_u24 v17, %d, v17" % CS); e("v_lshlrev_b32 v18, 4, v18"); e("v_add3_u32 v17, v17, v18, s6")
    e("v_cmp_gt_u32 vcc, 20, v0"); e("s_and_saveexec_b64 s[26:27], vcc"); e("ds_write_b128 v17, v[12:15] offset:%d" % XC); e("s_mov_b64 exec, s[26:27]")
    e("v_and_b32 v11, 31, v0"); e("v_lshrrev_b32 v12, 5, v0"); e("v_and_b32 v13, 3, v0"); e("v_sub_u32 v13, 3, v13")
    e("s_mov_b32 s7, %d" % (CS + 2)); e("v_mul_lo_u32 v3, s7, v13"); e("v_lshlrev_b32 v14, 1, v11"); e("v_add_u32 v3, v3, v14")
    e("v_lshlrev_b32 v14, 4, v12"); e("v_sub_u32 v3, v3, v14"); e("v_add_u32 v3, %d, v3" % (XC + 26)); e("v_add_u32 v3, s6, v3")
    e("v_mul_u32_u24 v4, 80, v11"); e("v_add_u32 v4, v4, v14"); e("v_add_u32 v4, %d, v4" % KB); e("v_add_u32 v4, s6, v4")
    e("v_mul_u32_u24 v5, 72, v11"); e("v_lshlrev_b32 v14, 3, v12"); e("v_add_u32 v5, v5, v14"); e("v_add_u32 v5, %d, v5" % YT); e("v_add_u32 v5, s6, v5")
    e("s_lshl_b32 s7, s3, 4"); e("v_add_u32 v14, s7, v12"); e("v_mul_u32_u24 v6, 72, v14"); e("v_lshlrev_b32 v14, 1, v11"); e("v_add_u32 v6, v6, v14")
    e("v_add_u32 v6, %d, v6" % YT); e("v_add_u32 v7, %d, v6" % (2 * REGION))
    e("v_lshlrev_b32 v8, 6, v11"); e("v_lshl_add_u32 v8, v12, 3, v8"); e("v_mov_b32 v9, v8"); e("v_add_u32 v8, s6, v8"); e("v_add_u32 v8, 72, v8")
    e("s_lshl_b32 s7, s25, 12"); e("v_add_u32 v9, s7, v9")
    e("s_waitcnt lgkmcnt(0)"); e("s_lshl_b32 s81, s80, 16"); e("s_and_b32 s82, s80, 0xffff0000"); e("s_and_b32 s7, s25, 1"); e("s_cmp_eq_u32 s7, 0"); e("s_cselect_b32 s81, s81, s82")
    e("v_lshlrev_b32 v16, 4, v0"); e("v_add_u32 v16, s6, v16")
    e("s_waitcnt lgkmcnt(0)")
    for t in range(4):
        e("s_waitcnt vmcnt(%d)" % (7 - t))
        for cc in range(4):
            for j in range(8):
                e("%s v16, v%d offset:%d" % ("ds_write_b16" if j % 2 == 0 else "ds_write_b16_d16_hi", 36 + 4 * t + j // 2, XC + cc * CS + 2 * (36 + cc) + 1024 * t + 2 * j))
    e("s_waitcnt vmcnt(0)")
    e("v_lshrrev_b32 v12, 2, v0"); e("v_mul_u32_u24 v12, 80, v12"); e("v_and_b32 v13, 3, v0"); e("v_lshlrev_b32 v13, 4, v13"); e("v_add3_u32 v12, v12, v13, s6")
    for t in range(4):
        for d in range(4): e("v_alignbit_b32 v%d, v%d, v%d, 16" % (14 + d, 100 + 4 * t + 3 - d, 100 + 4 * t + 3 - d))
        e("ds_write_b128 v12, v[14:17] offset:%d" % (KB + 80 * (31 + 16 * t)))
    for t in range(2):
        for g in range(4): e("buffer_load_dwordx2 v[%d:%d], v9, s[16:19], 0 offen offset:%d" % (36 + 8 * t + 2 * g, 37 + 8 * t + 2 * g, 2048 * t + 16 * g))
    e("s_waitcnt lgkmcnt(0)")
    ACC, FR = 68, 100
    for i in range(32): e("v_mov_b32 v%d, 0" % (ACC + i))
    steps = [(b, k) for b in range(64) for k in range(2)]
    def issue(s):
        b, k = steps[s]; f = FR + 12 * (s % 3); o = 64 * b - 32 * k + 32
        e("ds_read_b64 v[%d:%d], v3 offset:%d" % (f, f + 1, o)); e("ds_read_b64 v[%d:%d], v3 offset:%d" % (f + 2, f + 3, o + 8))
        e("ds_read_b128 v[%d:%d], v4 offset:%d" % (f + 4, f + 7, 80 * (63 - b) + 32 * k))
        if b < 32: e("ds_read_b128 v[%d:%d], v4 offset:%d" % (f + 8, f + 11, 80 * (31 - b) + 32 * k)); return 4
        return 3
    cnt = [0] * len(steps); cnt[0] = issue(0); cnt[1] = issue(1)
    for s in range(len(steps)):
        if s + 2 < len(steps): cnt[s + 2] = issue(s + 2); o = cnt[s + 1] + cnt[s + 2]
        elif s + 1 < len(steps): o = cnt[s + 1]
        else: o = 0
        e("s_waitcnt lgkmcnt(%d)" % o); f = FR + 12 * (s % 3)
        e("v_mfma_f32_32x32x16_bf16 v[84:99], v[%d:%d], v[%d:%d], v[84:99]" % (f, f + 3, f + 4, f + 7))
        if steps[s][0] < 32: e("v_mfma_f32_32x32x16_bf16 v[68:83], v[%d:%d], v[%d:%d], v[68:83]" % (f, f + 3, f + 8, f + 11))
    e("s_nop 15"); e("s_nop 3"); e("s_waitcnt vmcnt(0)")
    for t in range(2):
        for g in range(4):
            a = ACC + 16 * t + 4 * g; qd = 36 + 8 * t + 2 * g
            e("ds_read_b64 v[12:13], v8 offset:%d" % (2048 * t + 16 * g))
            for j in range(4): e("v_cvt_pk_bf16_f32 v14, v%d, v%d" % (a + j, a + j)); e("v_and_b32 v%d, 0xffff0000, v14" % (a + j))
            e("s_waitcnt lgkmcnt(0)")
            for j in range(4): e(("v_lshlrev_b32 v%d, 16, v%d" if j % 2 == 0 else "v_and_b32 v%d, 0xffff0000, v%d") % (16 + j, 12 + j // 2)); e("v_mul_f32 v%d, s81, v%d" % (16 + j, 16 + j))
            for j in range(0, 4, 2):
                e("v_cvt_pk_bf16_f32 v14, v%d, v%d" % (16 + j, 17 + j)); e("v_lshlrev_b32 v%d, 16, v14" % (16 + j)); e("v_and_b32 v%d, 0xffff0000, v14" % (17 + j))
            for j in range(4): e("v_add_f32 v%d, v%d, v%d" % (16 + j, 16 + j, a + j))
            e("s_cmp_eq_u32 s5, 0"); e("s_cbranch_scc1 K2_m%d%d" % (t, g))
            for j in range(0, 4, 2):
                e("v_cvt_pk_bf16_f32 v14, v%d, v%d" % (16 + j, 17 + j)); e("v_lshlrev_b32 v%d, 16, v14" % (16 + j)); e("v_and_b32 v%d, 0xffff0000, v14" % (17 + j))
            for j in range(4): e(("v_lshlrev_b32 v%d, 16, v%d" if j % 2 == 0 else "v_and_b32 v%d, 0xffff0000, v%d") % (20 + j, qd + j // 2)); e("v_mul_f32 v%d, v%d, v%d" % (16 + j, 16 + j, 20 + j))
            lab("K2_m%d%d" % (t, g))
            e("v_cvt_pk_bf16_f32 v12, v16, v17"); e("v_cvt_pk_bf16_f32 v13, v18, v19")
            e("ds_write_b64 v5, v[12:13] offset:%d" % (72 * 32 * t + 16 * g))
    e("s_waitcnt lgkmcnt(0)"); e("s_barrier")
    e("s_lshl_b32 s7, s3, 9"); e("v_add_u32 v10, s7, v0"); e("v_lshlrev_b32 v10, 11, v10"); e("s_lshl_b32 s7, s4, 1"); e("v_add_u32 v10, s7, v10")
    e("s_lshl_b32 s7, s5, 10"); e("v_add_u32 v10, s7, v10")
    for g in range(8):
        for ch in range(4): e("ds_read_u16 v%d, v%d offset:%d" % (12 + ch, 6 if ch < 2 else 7, (ch & 1) * REGION + 144 * g))
        e("s_waitcnt lgkmcnt(0)"); e("v_lshl_or_b32 v16, v13, 16, v12"); e("v_lshl_or_b32 v17, v15, 16, v14")
        e("s_mov_b32 s7, %d" % (131072 * g)); e("buffer_store_dwordx2 v[16:17], v10, s[20:23], s7 offen")
    lab("K2_end")
    kend(K, 144)

hdr = open("cdna_kernels/%s.s.ref" % NAME).read().split("\n")
for l in hdr:
    if l.startswith(";") and "@launch" not in l: out.append(l)
out.append("; @launch kernel=prep_kernel grid=(448,1,1) block=(512,1,1) lds=69632")
out.append("; @launch kernel=%s_kernel grid=(256,1,1) block=(256,1,1) lds=%d" % (NAME, 4 * REGION))
out.append('.amdgcn_target "amdgcn-amd-amdhsa--gfx950"')
k1(); k2()
open("cdna_kernels/%s.s" % NAME, "w").write("\n".join(out) + "\n")
print(len(out))
```
